```python
import torch

def _softmax(x, axis=-1):
    return torch.softmax(x, dim=axis)
def _gelu(x):
    return torch.nn.functional.gelu(x, approximate="tanh")
def _silu(x):
    return torch.nn.functional.silu(x)
def _sigmoid(x):
    return torch.sigmoid(x)
def _layernorm(x, axis=-1, eps=1e-5):
    m = x.mean(dim=axis, keepdim=True)
    v = x.var(dim=axis, keepdim=True, unbiased=False)
    return (x - m) / torch.sqrt(v + eps)
def _scatter_add(tgt, idx, src, axis=0):
    return tgt.clone().index_add_(axis, idx, src)
def _segment_sum(src, seg, n):
    out = torch.zeros((n,) + src.shape[1:], dtype=src.dtype)
    return out.index_add_(0, seg, src)
def _pad(x, pw):
    flat = tuple(v for pair in reversed(pw) for v in pair)
    return torch.nn.functional.pad(x, flat)

kernel_name = 'standalone__cross_network_dcn__recsys'

def setup_inputs():

    _w = (lambda a: (lambda t: t.to(torch.bfloat16) if t.is_floating_point() else t)(torch.as_tensor(a)))
    B, F, D, L = 4096, 100, 64, 3
    Din = min(F * D, 1024)
    return {
        "x0": _w((lambda *s: torch.randn(*s, dtype=torch.bfloat16) * 0.05)(B, Din)),
        "ws": _w((lambda *s: torch.randn(*s, dtype=torch.bfloat16) * 0.8)(L, Din, Din) * (Din ** -0.5)),
        "bs": _w((lambda *s: torch.randn(*s, dtype=torch.bfloat16) * 3.2)(L, Din) * 0.01),
    }

def reference(x0, ws, bs):
    x = x0
    L = ws.shape[0]
    for l in range(L):
        proj = torch.einsum('bd,de->be', x, ws[l]) + bs[l]
        x = x0 * proj + x
    return x
```

```python
import sys

KNAME = "standalone__cross_network_dcn__recsys_kernel"

class P:
    sc1_store = True
    stamps = False
    bar_gap = 3
    prio = 2
    poll_max = 20000
    nosync = False
    dbl = 0

LDS_X = 0
LDS_W = 65536
LDS_B = 131072
LDS_SIZE = 131072 + 1024
WS_X1 = 0
WS_X2 = 8 << 20
WS_FLAG = 16 << 20
WS_V = (16 << 20) + 0x10000
WS_STAMP = (17 << 20)
WS_SIZE = (18 << 20)
TAGK = 0x6A09E667

class Em:
    def __init__(s):
        s.L = []
        s.lds = []
        s.vm = []
    def __call__(s, t):
        for x in t.split("\n"):
            x = x.strip()
            if x: s.L.append("    " + x if not x.endswith(":") else x)
    def label(s, n): s.L.append(n + ":")
    def lds_op(s, text, dst=()):
        s(text); s.lds.append(set(dst))
    def need(s, regs):
        regs = set(regs)
        last = -1
        for i, d in enumerate(s.lds):
            if d & regs: last = i
        if last >= 0:
            n = min(len(s.lds) - 1 - last, 15)
            s(f"s_waitcnt lgkmcnt({n})")
            s.lds = s.lds[len(s.lds)-n:] if n else []
    def lds_all(s):
        if s.lds: s("s_waitcnt lgkmcnt(0)")
        s.lds = []
    def vm_op(s, text, tag):
        s(text); s.vm.append(tag)
    def vm_need(s, tags):
        last = -1
        for i, t in enumerate(s.vm):
            if t in tags: last = i
        if last >= 0:
            n = len(s.vm) - 1 - last
            assert n <= 63, n
            s(f"s_waitcnt vmcnt({n})")
            s.vm = s.vm[last+1:]
    def text(s): return "\n".join(s.L)

def R(a, n): return list(range(a, a+n))
def vr(a, n): return f"v[{a}:{a+n-1}]" if n > 1 else f"v{a}"

V_LANE = 0
V_XA0, V_XA1 = 1, 2
V_WA = 3
V_LW = 7
V_GO = 8
V_FO = 9
V_FD = 10
V_T = 11
ACC = 16
FR = 80
X0F = 144
RES = 208
BIAS = 240
def acc(rt, ct): return ACC + (rt*4+ct)*4
def xfr(st, rt): return FR + st*32 + rt*4
def wfr(st, ct): return FR + st*32 + 16 + ct*4
def x0f(rt, ct): return X0F + (rt*4+ct)*4
def res(rt, ct): return RES + (rt*4+ct)*2

SNAKE = []
for rt in range(4):
    for ct in (range(4) if rt % 2 == 0 else range(3, -1, -1)):
        SNAKE.append((rt, ct))

S_WAVE=3
SRD_X=8; SRD_W=12; SRD_WS=16; SRD_O=20; SRD_B=24
S_G=28; S_C=29; S_A=30; S_B2=31
S_TAG=32; S_MASK=33
S_T0=34
S_XB0=48; S_XB1=49; S_XB2=50; S_WB0=51; S_WB1=52; S_LX=53; S_KC=54; S_SO=55; S_SW=56; S_CNT=57
S_ST=58
S_STO=60; S_STO2=61

def stamp(e, p, idx):
    if not p.stamps: return
    e(f"s_memtime s[62:63]\ns_waitcnt lgkmcnt(0)\nv_writelane_b32 v{p.stampreg}, s62, {idx}")

def xread(e, st, rt, u, slot):
    r = xfr(st, rt)
    e.lds_op(f"ds_read_b128 {vr(r,4)}, v{V_XA0+u} offset:{slot*16384 + rt*2048}", R(r,4))
def wread(e, st, ct, u, h, slot):
    r = wfr(st, ct) + 2*h
    e.lds_op(f"ds_read_b64_tr_b16 {vr(r,2)}, v{V_WA+ct} offset:{slot*16384 + u*8192 + h*4096}", R(r,2))

def frag_reads(st, u, slot, only=None):
    out = []
    def W(ct,h): return lambda e: wread(e, st, ct, u, h, slot)
    def X(rt): return lambda e: xread(e, st, rt, u, slot)
    seq = [("w",W(0,0)),("w",W(0,1)),("x",X(0)),("w",W(1,0)),("w",W(1,1)),("w",W(2,0)),("w",W(2,1)),
           ("w",W(3,0)),("w",W(3,1)),("x",X(1)),("x",X(2)),("x",X(3))]
    return [f for k,f in seq if only is None or k == only]

def step(e, p, st, fills, first=False, pre=None):
    for m,(rt,ct) in enumerate(SNAKE):
        a = acc(rt,ct); w = wfr(st,ct); x = xfr(st,rt)
        e.need(R(w,4)+R(x,4))
        c = BIAS+ct*4 if first else a
        e(f"v_mfma_f32_16x16x32_bf16 {vr(a,4)}, {vr(w,4)}, {vr(x,4)}, {vr(c,4)}")
        for f in fills.get(m, []): f(e)

def spread(items, start, end, dbl=0):
    d = {}
    g = start; i = 0
    while i < len(items):
        n = 2 if (g - start) < dbl else 1
        for k in range(n):
            if i < len(items): d.setdefault(min(g, end), []).append(items[i]); i += 1
        g += 1
    return d
def merge(*ds):
    o = {}
    for d in ds:
        for k,v in d.items(): o.setdefault(k, []).extend(v)
    return o

def gen_compute(e, p):
    e.label("L_compute")
    e(f"s_and_b32 s{S_B2}, s{S_WAVE}, 1\ns_lshr_b32 s{S_A}, s{S_WAVE}, 1")
    e(f"s_setprio {p.prio}")
    e(f"v_and_b32 v{V_LANE}, 63, v0")
    T=V_T
    e(f"v_and_b32 v{T}, 15, v{V_LANE}")
    e(f"v_lshrrev_b32 v{T+1}, 4, v{V_LANE}")
    e(f"v_lshrrev_b32 v{T+2}, 1, v{T}\nv_and_b32 v{T+2}, 7, v{T+2}")
    e(f"v_xor_b32 v{T+3}, v{T+2}, v{T+1}\nv_lshlrev_b32 v{T+3}, 4, v{T+3}")
    e(f"v_lshlrev_b32 v{T+4}, 7, v{T}\nv_add_u32 v{T+3}, v{T+3}, v{T+4}")
    e(f"s_lshl_b32 s{S_T0}, s{S_A}, 13")
    e(f"v_add_u32 v{V_XA0}, s{S_T0}, v{T+3}\nv_xor_b32 v{V_XA1}, 64, v{V_XA0}")
    e(f"v_lshrrev_b32 v{T+3}, 1, v{T+1}\nv_xor_b32 v{T+3}, v{T+3}, v{T+2}\nv_lshlrev_b32 v{T+3}, 4, v{T+3}")
    e(f"v_add_u32 v{T+3}, v{T+3}, v{T+4}\nv_and_b32 v{T+4}, 1, v{T+1}\nv_lshlrev_b32 v{T+4}, 3, v{T+4}\nv_add_u32 v{T+3}, v{T+3}, v{T+4}")
    e(f"s_lshl_b32 s{S_T0+1}, s{S_B2}, 14\ns_add_u32 s{S_T0+1}, s{S_T0+1}, s{S_T0}")
    e(f"v_add_u32 v{V_LW}, s{S_T0+1}, v{T+3}")
    e(f"v_lshrrev_b32 v{T+2}, 2, v{T}\nv_lshlrev_b32 v{T+3}, 2, v{T+1}\nv_add_u32 v{T+2}, v{T+2}, v{T+3}")
    e(f"v_and_b32 v{T+3}, 7, v{T+2}")
    e(f"v_lshlrev_b32 v{T+2}, 8, v{T+2}\nv_and_b32 v{T+4}, 3, v{T}\nv_lshlrev_b32 v{T+4}, 3, v{T+4}\nv_add_u32 v{T+2}, v{T+2}, v{T+4}")
    e(f"v_add_u32 v{T+2}, {LDS_W}, v{T+2}")
    e(f"s_lshl_b32 s{S_T0+2}, s{S_B2}, 2")
    for ct in range(4):
        e(f"s_add_u32 s{S_T0+3}, s{S_T0+2}, {ct}\nv_xor_b32 v{T+4}, s{S_T0+3}, v{T+3}\nv_lshlrev_b32 v{T+4}, 5, v{T+4}\nv_add_u32 v{V_WA+ct}, v{T+2}, v{T+4}")
    e(f"v_lshlrev_b32 v{V_GO}, 4, v{V_LANE}")
    e(f"s_lshl_b32 s{S_T0+3}, s{S_G}, 8\ns_lshl_b32 s{S_T0+4}, s{S_C}, 4\ns_add_u32 s{S_T0+3}, s{S_T0+3}, s{S_T0+4}")
    e(f"s_lshl_b32 s{S_T0+4}, s{S_WAVE}, 2\ns_add_u32 s{S_T0+3}, s{S_T0+3}, s{S_T0+4}\ns_add_u32 s{S_T0+3}, s{S_T0+3}, {WS_FLAG}")
    e(f"v_mov_b32 v{V_FO}, 0x7ffffff0\nv_mov_b32 v{T+4}, s{S_T0+3}\nv_cmp_eq_u32 vcc, 0, v{V_LANE}\ns_nop 1\nv_cndmask_b32 v{V_FO}, v{V_FO}, v{T+4}, vcc")
    e(f"s_mov_b32 s{S_MASK}, 0xffff0000")
    e(f"s_lshl_b32 s{S_STO}, s{S_G}, 18\ns_lshl_b32 s{S_T0+3}, s{S_C}, 15\ns_add_u32 s{S_STO}, s{S_STO}, s{S_T0+3}\ns_add_u32 s{S_STO}, s{S_STO}, s{S_T0+1}")
    e(f"s_add_u32 s{S_STO2}, s{S_STO}, 4096")
    e("s_waitcnt lgkmcnt(0)")
    e(f"s_add_u32 s{S_TAG}, s{S_TAG}, {TAGK}")
    e(f"v_mov_b32 v{V_FD}, s{S_TAG}")

    def bias_reads(l):
        def f0(e):
            e(f"v_lshrrev_b32 v{T}, 4, v{V_LANE}\nv_lshlrev_b32 v{T}, 3, v{T}\ns_lshl_b32 s{S_T0}, s{S_B2}, 7\ns_add_u32 s{S_T0}, s{S_T0}, {LDS_B}\nv_add_u32 v{T}, s{S_T0}, v{T}")
        out=[f0]
        for ct in range(4):
            r = BIAS+ct*4+2
            out.append(lambda e, ct=ct, r=r: e.lds_op(f"ds_read_b64 {vr(r,2)}, v{T} offset:{l*256 + ct*32}", R(r,2)))
        return out
    def bias_unpack():
        out=[]
        for ct in range(4):
            b = BIAS+ct*4
            def f(e, b=b):
                e.need(R(b+2,2))
                e(f"v_lshlrev_b32 v{b}, 16, v{b+2}\nv_and_b32 v{b+1}, s{S_MASK}, v{b+2}")
                e(f"v_lshlrev_b32 v{b+2}, 16, v{b+3}\nv_and_b32 v{b+3}, s{S_MASK}, v{b+3}")
            out.append(f)
        return out

    e("s_barrier")
    stamp(e,p,0)
    for f in bias_reads(0): f(e)
    for f in frag_reads(0,0,0): f(e)
    for f in bias_unpack(): f(e)
    e("s_nop 1")
    unpack_q = []
    for l in range(3):
        for j in range(16):
            n = 16*l + j; slot = n % 4
            fills = spread(frag_reads(1,1,slot), 0, 15)
            extra = {}
            if l == 0 and j == 1:
                items = []
                for ct in range(4):
                    items.append(lambda e, ct=ct: e(f"v_xor_b32 v{T+ct}, {ct*32}, v{V_LW}"))
                for rt in range(4):
                    for ct in range(4):
                        r = res(rt,ct)
                        items.append(lambda e, rt=rt, ct=ct, r=r: e.lds_op(f"ds_read_b64 {vr(r,2)}, v{T+ct} offset:{rt*2048}", R(r,2)))
                extra = {}
                k=0
                for g in range(16):
                    extra[g] = items[k:k+2] if g < 4 else items[k:k+1]
                    k += len(extra[g])
                assert k == len(items), (k, len(items))
                for rt in range(4):
                    for ct in range(4):
                        for d in range(2):
                            def f(e, rt=rt, ct=ct, d=d):
                                r = res(rt,ct)+d; x = x0f(rt,ct)+2*d
                                e.need([r])
                                e(f"v_lshlrev_b32 v{x}, 16, v{r}\nv_and_b32 v{x+1}, s{S_MASK}, v{r}")
                            unpack_q.append(f)
            if l > 0 and j == 0:
                def pub(e, l=l):
                    e("s_waitcnt vmcnt(0)")
                    sc = " sc1" if p.sc1_store else ""
                    e(f"buffer_store_dword v{V_FD}, v{V_FO}, s[{SRD_WS}:{SRD_WS+3}], 0 offen offset:{(l-1)*128}{sc}")
                extra = {p.pub_gap: [pub]}
            if l == 0 and j >= 3 and unpack_q:
                items = unpack_q[:4]; unpack_q = unpack_q[4:]
                extra = merge(extra, {12+i:[it] for i,it in enumerate(items)})
            step(e, p, 0, merge(fills, extra), first=(j == 0))
            fills = {}
            barrier = not (l > 0 and j == 0) and not (n == 47)
            start = 0
            if barrier:
                def bar(e):
                    e.lds_all(); e("s_barrier")
                fills = {p.bar_gap: [bar]}
                start = p.bar_gap + 1
            if j < 15:
                fills = merge(fills, spread(frag_reads(0,0,(n+1)%4), start, 15, dbl=p.dbl if barrier else 0))
            elif l < 2:
                items = frag_reads(0,0,(n+1)%4, only="w") + bias_reads(l+1)
                fills = merge(fills, spread(items, start, 15, dbl=2))
            if l == 0 and j >= 3 and unpack_q:
                items = unpack_q[:2]; unpack_q = unpack_q[2:]
                fills = merge(fills, {i:[it] for i,it in enumerate(items)})
            step(e, p, 1, fills)
        assert not unpack_q
        stamp(e,p,1+3*l)
        e("s_nop 7")
        TE = FR + 32
        if l == 0:
            e(f"s_lshl_b32 s{S_T0}, s{S_A}, 13\nv_add_u32 v{V_XA0}, s{S_T0}, v{V_GO}\nv_add_u32 v{V_XA1}, 1024, v{V_XA0}")
            e(f"s_lshl_b32 s{S_T0+1}, s{S_B2}, 14\ns_add_u32 s{S_T0+1}, s{S_T0+1}, s{S_T0}\nv_add_u32 v{V_LW}, s{S_T0+1}, v{V_GO}")
        if l == 2:
            e(f"v_and_b32 v{T}, 15, v{V_LANE}\nv_lshrrev_b32 v{T+1}, 4, v{V_LANE}")
            e(f"v_lshrrev_b32 v{T+2}, 1, v{T+1}\ns_lshl_b32 s{S_T0}, s{S_B2}, 3\nv_add_u32 v{T+2}, s{S_T0}, v{T+2}\nv_xor_b32 v{T+2}, v{T+2}, v{T}\nv_lshlrev_b32 v{T+2}, 4, v{T+2}")
            e(f"v_and_b32 v{T+3}, 1, v{T+1}\nv_lshlrev_b32 v{T+3}, 3, v{T+3}\nv_add_u32 v{T+2}, v{T+2}, v{T+3}")
            e(f"v_lshlrev_b32 v{T+3}, 8, v{T}\nv_add_u32 v{T+2}, v{T+2}, v{T+3}\ns_lshl_b32 s{S_T0}, s{S_A}, 14\nv_add_u32 v{V_LW}, s{S_T0}, v{T+2}")
            for ct in range(4): e(f"v_xor_b32 v{T+ct}, {ct*32}, v{V_LW}")
        k = 0
        for rt in range(4):
            for t in range(2):
                for d in range(4):
                    ct = 2*t + d//2; dd = d % 2
                    r = res(rt,ct)+dd; a = acc(rt,ct)+2*dd; x = x0f(rt,ct)+2*dd
                    tm = TE + 2*(k % 8); k += 1
                    e(f"v_lshlrev_b32 v{tm}, 16, v{r}\nv_and_b32 v{tm+1}, s{S_MASK}, v{r}")
                    e(f"v_pk_fma_f32 {vr(tm,2)}, {vr(x,2)}, {vr(a,2)}, {vr(tm,2)}")
                    e(f"v_cvt_pk_bf16_f32 v{r}, v{tm}, v{tm+1}")
                r = res(rt,2*t)
                if l < 2:
                    sc = " sc1" if p.sc1_store else ""
                    so = S_STO if rt < 2 else S_STO2
                    e(f"buffer_store_dwordx4 {vr(r,4)}, v{V_GO}, s[{SRD_WS}:{SRD_WS+3}], s{so} offen offset:{(rt%2)*2048+t*1024}{sc}")
                    e.lds_op(f"ds_write_b128 v{V_LW}, {vr(r,4)} offset:{rt*2048+t*1024}")
                else:
                    for c2 in range(2):
                        ct = 2*t+c2
                        e.lds_op(f"ds_write_b64 v{T+ct}, {vr(res(rt,ct),2)} offset:{rt*4096}")
        if l < 2:
            e(f"s_add_u32 s{S_STO}, s{S_STO}, {WS_X2-WS_X1}\ns_add_u32 s{S_STO2}, s{S_STO2}, {WS_X2-WS_X1}")
            for f in bias_unpack(): f(e)
            e.lds_all(); e("s_barrier")
            stamp(e,p,2+3*l)
            for f in frag_reads(0,0,0, only="x"): f(e)
            e("s_nop 1")
        else:
            e.lds_all(); e("s_barrier")
            stamp(e,p,2+3*l)
    e("s_branch L_outstore")

def gen_loader(e, p):
    e.label("L_loader")
    e(f"s_sub_u32 s{S_A}, s{S_WAVE}, 4")
    e(f"v_and_b32 v0, 63, v0")
    XV0=1; XV1=5; WV0=6; WV1=10; T=14
    e(f"v_lshlrev_b32 v{XV1}, 4, v0")
    e(f"v_lshrrev_b32 v{T}, 3, v0\nv_and_b32 v{T+1}, 7, v0\nv_lshrrev_b32 v{T+2}, 4, v0")
    for ee in range(4):
        e(f"v_add_u32 v{T+3}, {4*(ee&1)}, v{T+2}\nv_xor_b32 v{T+3}, v{T+3}, v{T+1}\nv_lshlrev_b32 v{T+3}, 4, v{T+3}")
        e(f"v_lshlrev_b32 v{T+4}, 11, v{T}\nv_add_u32 v{T+3}, v{T+3}, v{T+4}")
        e(f"v_add_u32 v{XV0+ee}, {ee*8*2048 - ee*1024}, v{T+3}")
    e(f"v_and_b32 v{T+1}, 15, v0")
    for ee in range(4):
        e(f"v_lshrrev_b32 v{T+3}, 1, v{T+1}\nv_add_u32 v{T+4}, {4*(ee&1)}, v{T+2}\nv_xor_b32 v{T+3}, v{T+3}, v{T+4}\nv_lshlrev_b32 v{T+3}, 5, v{T+3}")
        e(f"v_and_b32 v{T+4}, 1, v{T+1}\nv_lshlrev_b32 v{T+4}, 4, v{T+4}\nv_add_u32 v{T+3}, v{T+3}, v{T+4}")
        e(f"v_lshlrev_b32 v{T+4}, 11, v{T+2}\nv_add_u32 v{T+3}, v{T+3}, v{T+4}")
        e(f"v_add_u32 v{WV0+ee}, {ee*8*2048 - ee*1024}, v{T+3}")
        e(f"v_add_u32 v{WV1+ee}, {ee*4*2048 - ee*1024}, v{T+3}")
    e(f"s_lshl_b32 s{S_XB0}, s{S_G}, 18\ns_lshl_b32 s{S_T0}, s{S_A}, 16\ns_add_u32 s{S_XB0}, s{S_XB0}, s{S_T0}")
    e(f"s_lshl_b32 s{S_XB1}, s{S_G}, 18\ns_lshl_b32 s{S_LX}, s{S_A}, 12\ns_add_u32 s{S_XB1}, s{S_XB1}, s{S_LX}")
    e(f"s_lshr_b32 s{S_T0}, s{S_A}, 1\ns_lshl_b32 s{S_T0}, s{S_T0}, 5\ns_and_b32 s{S_T0+1}, s{S_A}, 1\ns_lshl_b32 s{S_T0+1}, s{S_T0+1}, 2\ns_add_u32 s{S_T0}, s{S_T0}, s{S_T0+1}")
    e(f"s_lshl_b32 s{S_WB0}, s{S_T0}, 11\ns_lshl_b32 s{S_T0+1}, s{S_C}, 8\ns_add_u32 s{S_WB0}, s{S_WB0}, s{S_T0+1}")
    e(f"s_lshl_b32 s{S_WB1}, s{S_A}, 15\ns_add_u32 s{S_WB1}, s{S_WB1}, s{S_T0+1}")
    def kc(j):
        e(f"s_lshl_b32 s{S_KC}, s{S_C}, 1\ns_add_u32 s{S_KC}, s{S_KC}, {j}\ns_and_b32 s{S_KC}, s{S_KC}, 15")
    def dma_x(n):
        l, j = divmod(n, 16); slot = n % 4
        kc(j)
        e(f"s_add_u32 m0, s{S_LX}, {LDS_X + slot*16384}")
        if l == 0:
            e(f"s_lshl_b32 s{S_SO}, s{S_KC}, 7\ns_add_u32 s{S_SO}, s{S_SO}, s{S_XB0}")
            for ee in range(4): e.vm_op(f"buffer_load_dwordx4 v{XV0+ee}, s[{SRD_X}:{SRD_X+3}], s{S_SO} offen offset:{ee*1024} lds", ("x",n))
        else:
            e(f"s_lshl_b32 s{S_SO}, s{S_KC}, 14\ns_add_u32 s{S_SO}, s{S_SO}, s{S_XB1}")
            if l == 2: e(f"s_add_u32 s{S_SO}, s{S_SO}, {WS_X2}")
            for ee in range(4): e.vm_op(f"buffer_load_dwordx4 v{XV1}, s[{SRD_WS}:{SRD_WS+3}], s{S_SO} offen offset:{ee*1024} sc1 lds", ("x",n))
    def dma_w(n):
        l, j = divmod(n, 16); slot = n % 4
        kc(j)
        e(f"s_add_u32 m0, s{S_LX}, {LDS_W + slot*16384}")
        e(f"s_lshl_b32 s{S_SW}, s{S_KC}, 17\ns_add_u32 s{S_SW}, s{S_SW}, s{S_WB0 if l == 0 else S_WB1}")
        if l > 0: e(f"s_add_u32 s{S_SW}, s{S_SW}, {l*(2<<20)}")
        wv = WV0 if l == 0 else WV1
        for ee in range(4): e.vm_op(f"buffer_load_dwordx4 v{wv+ee}, s[{SRD_W}:{SRD_W+3}], s{S_SW} offen offset:{ee*1024} lds", ("w",n))
    def dma(n):
        if n > 47: return
        l, j = divmod(n, 16)
        dma_w(n)
        if l == 0 or j >= 4: dma_x(n)
    dma_x(0); dma_w(0)
    e(f"s_min_u32 s{S_T0}, s{S_A}, 2\ns_lshl_b32 s{S_T0+1}, s{S_T0}, 8\ns_add_u32 m0, s{S_T0+1}, {LDS_B}")
    e(f"s_lshl_b32 s{S_T0+1}, s{S_T0}, 11\ns_lshl_b32 s{S_T0+2}, s{S_C}, 8\ns_add_u32 s{S_T0+1}, s{S_T0+1}, s{S_T0+2}")
    e(f"v_lshlrev_b32 v{T}, 2, v0")
    e.vm_op(f"buffer_load_dword v{T}, s[{SRD_B}:{SRD_B+3}], s{S_T0+1} offen lds", ("b",0))
    dma_x(1); dma_w(1)
    dma(2); dma(3)
    e(f"v_and_b32 v{T+1}, 31, v0\nv_lshlrev_b32 v{T+1}, 2, v{T+1}\ns_lshl_b32 s{S_T0}, s{S_G}, 8\ns_add_u32 s{S_T0}, s{S_T0}, {WS_FLAG}\nv_add_u32 v{T+1}, s{S_T0}, v{T+1}")
    e("s_waitcnt lgkmcnt(0)")
    e(f"s_add_u32 s{S_TAG}, s{S_TAG}, {TAGK}")
    e.vm_need([("x",0),("w",0),("b",0)])
    e("s_barrier")
    for l in range(3):
        for j in range(16):
            n = 16*l + j
            if l > 0 and j == 0: continue
            if n == 47: continue
            if j < 15 or l == 2 or True:
                e.vm_need([("x",n+1),("w",n+1)])
            e("s_barrier")
            if j == 0: pass
            elif j == 1: dma(n+3); dma(n+4)
            else: dma(n+4)
        if l < 2:
            n1 = 16*(l+1)
            e.vm_need([("w",n1),("w",n1+1)])
            e("s_barrier")
            if not p.nosync:
                e(f"s_mov_b32 s{S_CNT}, {p.poll_max}")
                e.label(f"L_poll{l}")
                e(f"buffer_load_dword v{T+2}, v{T+1}, s[{SRD_WS}:{SRD_WS+3}], 0 offen offset:{l*128} sc1")
                e("s_waitcnt vmcnt(0)")
                e(f"v_cmp_eq_u32 vcc, s{S_TAG}, v{T+2}")
                e("s_nop 1")
                e("s_cmp_eq_u64 vcc, -1")
                e(f"s_cbranch_scc1 L_ok{l}")
                e(f"s_sub_u32 s{S_CNT}, s{S_CNT}, 1\ns_cmp_lg_u32 s{S_CNT}, 0")
                e(f"s_cbranch_scc1 L_poll{l}")
                e.label(f"L_ok{l}")
                e.vm = []
            dma_x(n1+2); dma_x(n1+3)
            if l == 1:
                e(f"s_cmp_eq_u32 s{S_C}, 0\ns_cbranch_scc0 L_nov\ns_cmp_eq_u32 s{S_A}, 0\ns_cbranch_scc0 L_nov")
                e(f"v_mov_b32 v{T+3}, s{S_TAG}\ns_lshl_b32 s{S_T0}, s{S_G}, 7\ns_add_u32 s{S_T0}, s{S_T0}, {WS_V}\nv_mov_b32 v{T+4}, s{S_T0}")
                e(f"buffer_store_dword v{T+3}, v{T+4}, s[{SRD_WS}:{SRD_WS+3}], 0 offen sc1")
                e("s_waitcnt vmcnt(0)")
                e.label("L_nov")
        else:
            e("s_barrier")

def gen_outstore(e, p):
    e.label("L_outstore")
    e("v_and_b32 v1, 63, v0") if False else None
    e(f"v_mbcnt_lo_u32_b32 v1, -1, 0\nv_mbcnt_hi_u32_b32 v1, -1, v1")
    e(f"v_lshrrev_b32 v2, 4, v1\nv_and_b32 v3, 15, v1")
    e(f"s_lshl_b32 s{S_T0}, s{S_WAVE}, 4\nv_add_u32 v4, s{S_T0}, v2")
    e(f"v_lshlrev_b32 v5, 11, v4\nv_lshlrev_b32 v6, 4, v3\nv_add_u32 v5, v5, v6")
    e(f"s_lshl_b32 s{S_T0+1}, s{S_G}, 18\ns_lshl_b32 s{S_T0+2}, s{S_C}, 8\ns_add_u32 s{S_T0+1}, s{S_T0+1}, s{S_T0+2}")
    for i in range(4):
        e(f"v_add_u32 v6, {4*i}, v2\nv_xor_b32 v6, v6, v3\nv_lshlrev_b32 v6, 4, v6\nv_lshlrev_b32 v7, 8, v4\nv_add_u32 v6, v6, v7")
        e(f"ds_read_b128 v[{8+4*i}:{11+4*i}], v6 offset:{i*1024}")
    for i in range(1,4):
        e(f"v_add_u32 v{24+i}, {4*2048*i}, v5")
    e("v_mov_b32 v24, v5")
    for i in range(4):
        e(f"s_waitcnt lgkmcnt({3-i})")
        e(f"buffer_store_dwordx4 v[{8+4*i}:{11+4*i}], v{24+i}, s[{SRD_O}:{SRD_O+3}], s{S_T0+1} offen")
    return

def gen(p=None):
    p = p or P()
    e = Em()
    hdr = f"""; DCN-v2 cross network, 3 layers fused in one launch.  Generated by my own generator script (gen_k.py).
; @launch grid=(256,1,1) block=(512,1,1) lds={LDS_SIZE}
.amdgcn_target "amdgcn-amd-amdhsa--gfx950"
.text
.globl {KNAME}
.p2align 8
.type {KNAME},@function
{KNAME}:"""
    e(f"s_cmp_ge_u32 s2, 256\ns_cbranch_scc1 L_end")
    e("s_load_dwordx4 s[4:7], s[0:1], 0")
    e("s_load_dwordx4 s[36:39], s[0:1], 16")
    e("s_load_dwordx2 s[40:41], s[0:1], 40")
    e(f"v_lshrrev_b32 v1, 6, v0\ns_and_b32 s{S_G}, s2, 31\ns_lshr_b32 s{S_C}, s2, 5")
    e(f"v_readfirstlane_b32 s{S_WAVE}, v1")
    e("s_waitcnt lgkmcnt(0)")
    def srd(b, lo, size):
        e(f"s_mov_b32 s{b}, s{lo}\ns_mov_b32 s{b+1}, s{lo+1}\ns_mov_b32 s{b+2}, {size}\ns_mov_b32 s{b+3}, 0x00020000")
    srd(SRD_X, 4, 8<<20); srd(SRD_W, 6, 6<<20); srd(SRD_B, 36, 6144); srd(SRD_O, 38, 8<<20); srd(SRD_WS, 40, WS_SIZE)
    e(f"s_lshl_b32 s{S_T0}, s{S_G}, 7\ns_add_u32 s{S_T0}, s{S_T0}, {WS_V}")
    e(f"s_load_dword s{S_TAG}, s[40:41], s{S_T0}")
    e(f"s_cmp_ge_u32 s{S_WAVE}, 4\ns_cbranch_scc1 L_loader")
    gen_compute(e, p)
    gen_loader(e, p)
    gen_outstore(e, p)
    e.label("L_end")
    e("s_endpgm")
    tail = f""".section .rodata,"a"
.p2align 6
.amdhsa_kernel {KNAME}
  .amdhsa_next_free_vgpr 256
  .amdhsa_next_free_sgpr 72
  .amdhsa_accum_offset 256
  .amdhsa_group_segment_fixed_size 0
  .amdhsa_kernarg_size 48
  .amdhsa_user_sgpr_count 2
  .amdhsa_user_sgpr_kernarg_segment_ptr 1
  .amdhsa_system_sgpr_workgroup_id_x 1
.end_amdhsa_kernel
"""
    return hdr + "\n" + e.text() + "\n" + tail

P.pub_gap = 10
P.stampreg = 15

if __name__ == "__main__":
    p = P()
    for a in sys.argv[1:]:
        k, v = a.split("=")
        setattr(p, k, eval(v))
    sys.stdout.write(gen(p))
```

```python
import sys

KNAME = "standalone__cross_network_dcn__recsys_kernel"

class P:
    sc1_store = True
    stamps = False
    bar_gap = 3
    prio = 2
    poll_max = 20000
    nosync = False
    dbl = 0

LDS_X = 0
LDS_W = 65536
LDS_B = 131072
LDS_DUMMY = 131072 + 1024
LDS_SIZE = 131072 + 1024 + 2048
P_pref = [None]
WS_X1 = 0
WS_X2 = 8 << 20
WS_FLAG = 16 << 20
WS_V = (16 << 20) + 0x10000
WS_STAMP = (17 << 20)
WS_SIZE = (18 << 20)
TAGK = 0x6A09E667

class Em:
    def __init__(s):
        s.L = []
        s.lds = []
        s.vm = []
    def __call__(s, t):
        for x in t.split("\n"):
            x = x.strip()
            if x: s.L.append("    " + x if not x.endswith(":") else x)
    def label(s, n): s.L.append(n + ":")
    def lds_op(s, text, dst=()):
        s(text); s.lds.append(set(dst))
    def need(s, regs):
        regs = set(regs)
        last = -1
        for i, d in enumerate(s.lds):
            if d & regs: last = i
        if last >= 0:
            n = min(len(s.lds) - 1 - last, 15)
            s(f"s_waitcnt lgkmcnt({n})")
            s.lds = s.lds[len(s.lds)-n:] if n else []
    def lds_all(s):
        if s.lds: s("s_waitcnt lgkmcnt(0)")
        s.lds = []
    def vm_op(s, text, tag):
        s(text); s.vm.append(tag)
    def vm_need(s, tags):
        last = -1
        for i, t in enumerate(s.vm):
            if t in tags: last = i
        if last >= 0:
            n = len(s.vm) - 1 - last
            assert n <= 63, n
            s(f"s_waitcnt vmcnt({n})")
            s.vm = s.vm[last+1:]
    def text(s): return "\n".join(s.L)

def R(a, n): return list(range(a, a+n))
def vr(a, n): return f"v[{a}:{a+n-1}]" if n > 1 else f"v{a}"

V_LANE = 0
V_XA0, V_XA1 = 1, 2
V_WA = 3
V_LW = 7
V_GO = 8
V_FO = 9
V_FD = 10
V_T = 11
ACC = 16
FR = 80
X0F = 144
RES = 208
BIAS = 240
def acc(rt, ct): return ACC + (rt*4+ct)*4
def xfr(st, rt): return FR + st*32 + rt*4
def wfr(st, ct): return FR + st*32 + 16 + ct*4
def x0f(rt, ct): return X0F + (rt*4+ct)*4
def res(rt, ct): return RES + (rt*4+ct)*2

SNAKE_R = []
for rt in range(4):
    for ct in (range(4) if rt % 2 == 0 else range(3, -1, -1)):
        SNAKE_R.append((rt, ct))
SNAKE_C = []
for ct in range(4):
    for rt in (range(4) if ct % 2 == 0 else range(3, -1, -1)):
        SNAKE_C.append((rt, ct))
ORDER = {"r": SNAKE_R, "c": SNAKE_C}
CUR = {"order": "c"}

S_WAVE=3
SRD_X=8; SRD_W=12; SRD_WS=16; SRD_O=20; SRD_B=24
S_G=28; S_C=29; S_A=30; S_B2=31
S_TAG=32; S_MASK=33
S_T0=34
S_XB0=48; S_XB1=49; S_XB2=50; S_WB0=51; S_WB1=52; S_LX=53; S_KC=54; S_SO=55; S_SW=56; S_CNT=57
S_ST=58
S_STO=60; S_STO2=61

def stamp(e, p, idx, reg=None):
    if not p.stamps: return
    reg = reg or p.stampreg
    e(f"s_memtime s[62:63]\ns_memrealtime s[64:65]\ns_waitcnt lgkmcnt(0)\nv_writelane_b32 v{reg}, s62, {idx}\nv_writelane_b32 v{reg}, s64, {idx+32}")
    e.lds = []
def stamp_out(e, p, reg):
    if not p.stamps: return
    e(f"s_lshl_b32 s62, s2, 3\ns_add_u32 s62, s62, s{S_WAVE}\ns_lshl_b32 s62, s62, 8\ns_add_u32 s62, s62, {WS_STAMP}")
    e(f"v_mbcnt_lo_u32_b32 v40, -1, 0\nv_mbcnt_hi_u32_b32 v40, -1, v40\nv_lshlrev_b32 v40, 2, v40")
    e(f"buffer_store_dword v{reg}, v40, s[{SRD_WS}:{SRD_WS+3}], s62 offen")

def xread(e, st, rt, u, slot):
    r = xfr(st, rt)
    e.lds_op(f"ds_read_b128 {vr(r,4)}, v{V_XA0+u} offset:{slot*16384 + rt*2048}", R(r,4))
def wread(e, st, ct, u, h, slot):
    r = wfr(st, ct) + 2*h
    e.lds_op(f"ds_read_b64_tr_b16 {vr(r,2)}, v{V_WA+ct} offset:{slot*16384 + u*8192 + h*4096}", R(r,2))

def frag_reads(st, u, slot, only=None):
    out = []
    def W(ct,h): return lambda e: wread(e, st, ct, u, h, slot)
    def X(rt): return lambda e: xread(e, st, rt, u, slot)
    if CUR["order"] == "r":
        seq = [("w",W(0,0)),("w",W(0,1)),("x",X(0)),("w",W(1,0)),("w",W(1,1)),("w",W(2,0)),("w",W(2,1)),
               ("w",W(3,0)),("w",W(3,1)),("x",X(1)),("x",X(2)),("x",X(3))]
    else:
        seq = [("w",W(0,0)),("w",W(0,1)),("x",X(0)),("x",X(1)),("x",X(2)),("x",X(3)),("w",W(1,0)),("w",W(1,1)),
               ("w",W(2,0)),("w",W(2,1)),("w",W(3,0)),("w",W(3,1))]
    return [f for k,f in seq if only is None or k == only]

def step(e, p, st, fills, first=False, pre=None):
    for m,(rt,ct) in enumerate(ORDER[CUR['order']]):
        a = acc(rt,ct); w = wfr(st,ct); x = xfr(st,rt)
        e.need(R(w,4)+R(x,4))
        c = BIAS+ct*4 if first else a
        e(f"v_mfma_f32_16x16x32_bf16 {vr(a,4)}, {vr(w,4)}, {vr(x,4)}, {vr(c,4)}")
        for f in fills.get(m, []): f(e)

def spread(items, start, end, dbl=0):
    d = {}
    g = start; i = 0
    while i < len(items):
        n = 2 if (g - start) < dbl else 1
        for k in range(n):
            if i < len(items): d.setdefault(min(g, end), []).append(items[i]); i += 1
        g += 1
    return d
def merge(*ds):
    o = {}
    for d in ds:
        for k,v in d.items(): o.setdefault(k, []).extend(v)
    return o

def gen_compute(e, p):
    e.label("L_compute")
    e(f"s_and_b32 s{S_B2}, s{S_WAVE}, 1\ns_lshr_b32 s{S_A}, s{S_WAVE}, 1")
    e(f"s_setprio {p.prio}")
    e(f"v_and_b32 v{V_LANE}, 63, v0")
    T=V_T
    e(f"v_and_b32 v{T}, 15, v{V_LANE}")
    e(f"v_lshrrev_b32 v{T+1}, 4, v{V_LANE}")
    e(f"v_lshrrev_b32 v{T+2}, 1, v{T}\nv_and_b32 v{T+2}, 7, v{T+2}")
    e(f"v_xor_b32 v{T+3}, v{T+2}, v{T+1}\nv_lshlrev_b32 v{T+3}, 4, v{T+3}")
    e(f"v_lshlrev_b32 v{T+4}, 7, v{T}\nv_add_u32 v{T+3}, v{T+3}, v{T+4}")
    e(f"s_lshl_b32 s{S_T0}, s{S_A}, 13")
    e(f"v_add_u32 v{V_XA0}, s{S_T0}, v{T+3}\nv_xor_b32 v{V_XA1}, 64, v{V_XA0}")
    e(f"v_lshrrev_b32 v{T+3}, 1, v{T+1}\nv_xor_b32 v{T+3}, v{T+3}, v{T+2}\nv_lshlrev_b32 v{T+3}, 4, v{T+3}")
    e(f"v_add_u32 v{T+3}, v{T+3}, v{T+4}\nv_and_b32 v{T+4}, 1, v{T+1}\nv_lshlrev_b32 v{T+4}, 3, v{T+4}\nv_add_u32 v{T+3}, v{T+3}, v{T+4}")
    e(f"s_lshl_b32 s{S_T0+1}, s{S_B2}, 14\ns_add_u32 s{S_T0+1}, s{S_T0+1}, s{S_T0}")
    e(f"v_add_u32 v{V_LW}, s{S_T0+1}, v{T+3}")
    e(f"v_lshrrev_b32 v{T+2}, 2, v{T}\nv_lshlrev_b32 v{T+3}, 2, v{T+1}\nv_add_u32 v{T+2}, v{T+2}, v{T+3}")
    e(f"v_and_b32 v{T+3}, 7, v{T+2}")
    e(f"v_lshlrev_b32 v{T+2}, 8, v{T+2}\nv_and_b32 v{T+4}, 3, v{T}\nv_lshlrev_b32 v{T+4}, 3, v{T+4}\nv_add_u32 v{T+2}, v{T+2}, v{T+4}")
    e(f"v_add_u32 v{T+2}, {LDS_W}, v{T+2}")
    e(f"s_lshl_b32 s{S_T0+2}, s{S_B2}, 2")
    for ct in range(4):
        e(f"s_add_u32 s{S_T0+3}, s{S_T0+2}, {ct}\nv_xor_b32 v{T+4}, s{S_T0+3}, v{T+3}\nv_lshlrev_b32 v{T+4}, 5, v{T+4}\nv_add_u32 v{V_WA+ct}, v{T+2}, v{T+4}")
    e(f"v_lshlrev_b32 v{V_GO}, 4, v{V_LANE}")
    e(f"s_lshl_b32 s{S_T0+3}, s{S_G}, 8\ns_lshl_b32 s{S_T0+4}, s{S_C}, 4\ns_add_u32 s{S_T0+3}, s{S_T0+3}, s{S_T0+4}")
    e(f"s_lshl_b32 s{S_T0+4}, s{S_WAVE}, 2\ns_add_u32 s{S_T0+3}, s{S_T0+3}, s{S_T0+4}\ns_add_u32 s{S_T0+3}, s{S_T0+3}, {WS_FLAG}")
    e(f"v_mov_b32 v{V_FO}, 0x7ffffff0\nv_mov_b32 v{T+4}, s{S_T0+3}\nv_cmp_eq_u32 vcc, 0, v{V_LANE}\ns_nop 1\nv_cndmask_b32 v{V_FO}, v{V_FO}, v{T+4}, vcc")
    e(f"s_mov_b32 s{S_MASK}, 0xffff0000")
    e(f"s_lshl_b32 s{S_STO}, s{S_G}, 18\ns_lshl_b32 s{S_T0+3}, s{S_C}, 15\ns_add_u32 s{S_STO}, s{S_STO}, s{S_T0+3}\ns_add_u32 s{S_STO}, s{S_STO}, s{S_T0+1}")
    e(f"s_add_u32 s{S_STO2}, s{S_STO}, 4096")
    e("s_waitcnt lgkmcnt(0)")
    e(f"s_add_u32 s{S_TAG}, s{S_TAG}, {TAGK}")
    e(f"v_mov_b32 v{V_FD}, s{S_TAG}")

    def bias_reads(l):
        def f0(e):
            e(f"v_lshrrev_b32 v{T}, 4, v{V_LANE}\nv_lshlrev_b32 v{T}, 3, v{T}\ns_lshl_b32 s{S_T0}, s{S_B2}, 7\ns_add_u32 s{S_T0}, s{S_T0}, {LDS_B}\nv_add_u32 v{T}, s{S_T0}, v{T}")
        out=[f0]
        for ct in range(4):
            r = BIAS+ct*4+2
            out.append(lambda e, ct=ct, r=r: e.lds_op(f"ds_read_b64 {vr(r,2)}, v{T} offset:{l*256 + ct*32}", R(r,2)))
        return out
    def bias_unpack():
        out=[]
        for ct in range(4):
            b = BIAS+ct*4
            def f(e, b=b):
                e.need(R(b+2,2))
                e(f"v_lshlrev_b32 v{b}, 16, v{b+2}\nv_and_b32 v{b+1}, s{S_MASK}, v{b+2}")
                e(f"v_lshlrev_b32 v{b+2}, 16, v{b+3}\nv_and_b32 v{b+3}, s{S_MASK}, v{b+3}")
            out.append(f)
        return out

    if p.stamps: e("v_mov_b32 v15, 0\nv_writelane_b32 v15, s66, 0\nv_writelane_b32 v15, s68, 32")
    stamp(e,p,1)
    e("s_barrier")
    stamp(e,p,2)
    for f in bias_reads(0): f(e)
    for f in frag_reads(0,0,0): f(e)
    for f in bias_unpack(): f(e)
    e("s_nop 1")
    unpack_q = []
    for l in range(3):
        for j in range(16):
            n = 16*l + j; slot = n % 4
            fills = spread(frag_reads(1,1,slot), 0, 15, dbl=p.dbl0)
            extra = {}
            if l == 0 and j == 1:
                items = []
                for ct in range(4):
                    items.append(lambda e, ct=ct: e(f"v_xor_b32 v{T+ct}, {ct*32}, v{V_LW}"))
                for rt in range(4):
                    for ct in range(4):
                        r = res(rt,ct)
                        items.append(lambda e, rt=rt, ct=ct, r=r: e.lds_op(f"ds_read_b64 {vr(r,2)}, v{T+ct} offset:{rt*2048}", R(r,2)))
                extra = {}
                k=0
                for g in range(16):
                    extra[g] = items[k:k+2] if g < 4 else items[k:k+1]
                    k += len(extra[g])
                assert k == len(items), (k, len(items))
                for rt in range(4):
                    for ct in range(4):
                        for d in range(2):
                            def f(e, rt=rt, ct=ct, d=d):
                                r = res(rt,ct)+d; x = x0f(rt,ct)+2*d
                                e.need([r])
                                e(f"v_lshlrev_b32 v{x}, 16, v{r}\nv_and_b32 v{x+1}, s{S_MASK}, v{r}")
                            unpack_q.append(f)
            if l > 0 and j == 0:
                def pub(e, l=l):
                    e("s_waitcnt vmcnt(0)")
                    stamp(e, p, 10+l)
                    sc = " sc1" if p.sc1_store else ""
                    e(f"buffer_store_dword v{V_FD}, v{V_FO}, s[{SRD_WS}:{SRD_WS+3}], 0 offen offset:{(l-1)*128}{sc}")
                extra = {p.pub_gap: [pub]}
            if l == 0 and j >= 3 and unpack_q:
                items = unpack_q[:4]; unpack_q = unpack_q[4:]
                extra = merge(extra, {12+i:[it] for i,it in enumerate(items)})
            step(e, p, 0, merge(fills, extra), first=(j == 0))
            fills = {}
            barrier = not (l > 0 and j == 0) and not (n == 47)
            start = 0
            if barrier:
                def bar(e, n=n):
                    e.lds_all(); e("s_barrier")
                    if n in (17, 33): stamp(e, p, 5 + 3*(n//16 - 1))
                fills = {p.bar_gap: [bar]}
                start = p.bar_gap + 1
            if j < 15:
                fills = merge(fills, spread(frag_reads(0,0,(n+1)%4), start, 15, dbl=p.dbl if barrier else 0))
            elif l < 2:
                items = frag_reads(0,0,(n+1)%4, only="w") + bias_reads(l+1)
                fills = merge(fills, spread(items, start, 15, dbl=2))
            if l == 0 and j >= 3 and unpack_q:
                items = unpack_q[:2]; unpack_q = unpack_q[2:]
                fills = merge(fills, {i:[it] for i,it in enumerate(items)})
            step(e, p, 1, fills)
        assert not unpack_q
        stamp(e,p,3+3*l)
        e("s_nop 7")
        TE = FR + 32
        if l == 0:
            e(f"s_lshl_b32 s{S_T0}, s{S_A}, 13\nv_add_u32 v{V_XA0}, s{S_T0}, v{V_GO}\nv_add_u32 v{V_XA1}, 1024, v{V_XA0}")
            e(f"s_lshl_b32 s{S_T0+1}, s{S_B2}, 14\ns_add_u32 s{S_T0+1}, s{S_T0+1}, s{S_T0}\nv_add_u32 v{V_LW}, s{S_T0+1}, v{V_GO}")
        if l == 2:
            e(f"v_and_b32 v{T}, 15, v{V_LANE}\nv_lshrrev_b32 v{T+1}, 4, v{V_LANE}")
            e(f"v_lshrrev_b32 v{T+2}, 1, v{T+1}\ns_lshl_b32 s{S_T0}, s{S_B2}, 3\nv_add_u32 v{T+2}, s{S_T0}, v{T+2}\nv_xor_b32 v{T+2}, v{T+2}, v{T}\nv_lshlrev_b32 v{T+2}, 4, v{T+2}")
            e(f"v_and_b32 v{T+3}, 1, v{T+1}\nv_lshlrev_b32 v{T+3}, 3, v{T+3}\nv_add_u32 v{T+2}, v{T+2}, v{T+3}")
            e(f"v_lshlrev_b32 v{T+3}, 8, v{T}\nv_add_u32 v{T+2}, v{T+2}, v{T+3}\ns_lshl_b32 s{S_T0}, s{S_A}, 14\nv_add_u32 v{V_LW}, s{S_T0}, v{T+2}")
            for ct in range(4): e(f"v_xor_b32 v{T+ct}, {ct*32}, v{V_LW}")
        k = 0
        for rt in range(4):
            for t in range(2):
                for d in range(4):
                    ct = 2*t + d//2; dd = d % 2
                    r = res(rt,ct)+dd; a = acc(rt,ct)+2*dd; x = x0f(rt,ct)+2*dd
                    tm = TE + 2*(k % 8); k += 1
                    e(f"v_lshlrev_b32 v{tm}, 16, v{r}\nv_and_b32 v{tm+1}, s{S_MASK}, v{r}")
                    e(f"v_pk_fma_f32 {vr(tm,2)}, {vr(x,2)}, {vr(a,2)}, {vr(tm,2)}")
                    e(f"v_cvt_pk_bf16_f32 v{r}, v{tm}, v{tm+1}")
                r = res(rt,2*t)
                if l < 2:
                    sc = " sc1" if p.sc1_store else ""
                    so = S_STO if rt < 2 else S_STO2
                    e(f"buffer_store_dwordx4 {vr(r,4)}, v{V_GO}, s[{SRD_WS}:{SRD_WS+3}], s{so} offen offset:{(rt%2)*2048+t*1024}{sc}")
                    e.lds_op(f"ds_write_b128 v{V_LW}, {vr(r,4)} offset:{rt*2048+t*1024}")
                else:
                    for c2 in range(2):
                        ct = 2*t+c2
                        e.lds_op(f"ds_write_b64 v{T+ct}, {vr(res(rt,ct),2)} offset:{rt*4096}")
        if l < 2:
            e(f"s_add_u32 s{S_STO}, s{S_STO}, {WS_X2-WS_X1}\ns_add_u32 s{S_STO2}, s{S_STO2}, {WS_X2-WS_X1}")
            for f in bias_unpack(): f(e)
            e.lds_all()
            stamp(e,p,4+3*l)
            e("s_barrier")
            for f in frag_reads(0,0,0, only="x"): f(e)
            e("s_nop 1")
        else:
            e.lds_all()
            stamp(e,p,4+3*l)
            e("s_barrier")
    if p.stamps: e("v_mov_b32 v30, v15")
    e("s_branch L_outstore")

def gen_loader(e, p):
    e.label("L_loader")
    e(f"s_sub_u32 s{S_A}, s{S_WAVE}, 4")
    e(f"v_and_b32 v0, 63, v0")
    XV0=1; XV1=5; WV0=6; WV1=10; T=14
    e(f"v_lshlrev_b32 v{XV1}, 4, v0")
    e(f"v_lshrrev_b32 v{T}, 3, v0\nv_and_b32 v{T+1}, 7, v0\nv_lshrrev_b32 v{T+2}, 4, v0")
    for ee in range(4):
        e(f"v_add_u32 v{T+3}, {4*(ee&1)}, v{T+2}\nv_xor_b32 v{T+3}, v{T+3}, v{T+1}\nv_lshlrev_b32 v{T+3}, 4, v{T+3}")
        e(f"v_lshlrev_b32 v{T+4}, 11, v{T}\nv_add_u32 v{T+3}, v{T+3}, v{T+4}")
        e(f"v_add_u32 v{XV0+ee}, {ee*8*2048 - ee*1024}, v{T+3}")
    e(f"v_and_b32 v{T+1}, 15, v0")
    for ee in range(4):
        e(f"v_lshrrev_b32 v{T+3}, 1, v{T+1}\nv_add_u32 v{T+4}, {4*(ee&1)}, v{T+2}\nv_xor_b32 v{T+3}, v{T+3}, v{T+4}\nv_lshlrev_b32 v{T+3}, 5, v{T+3}")
        e(f"v_and_b32 v{T+4}, 1, v{T+1}\nv_lshlrev_b32 v{T+4}, 4, v{T+4}\nv_add_u32 v{T+3}, v{T+3}, v{T+4}")
        e(f"v_lshlrev_b32 v{T+4}, 11, v{T+2}\nv_add_u32 v{T+3}, v{T+3}, v{T+4}")
        e(f"v_add_u32 v{WV0+ee}, {ee*8*2048 - ee*1024}, v{T+3}")
        e(f"v_add_u32 v{WV1+ee}, {ee*4*2048 - ee*1024}, v{T+3}")
    e(f"s_lshl_b32 s{S_XB0}, s{S_G}, 18\ns_lshl_b32 s{S_T0}, s{S_A}, 16\ns_add_u32 s{S_XB0}, s{S_XB0}, s{S_T0}")
    e(f"s_lshl_b32 s{S_XB1}, s{S_G}, 18\ns_lshl_b32 s{S_LX}, s{S_A}, 12\ns_add_u32 s{S_XB1}, s{S_XB1}, s{S_LX}")
    e(f"s_lshr_b32 s{S_T0}, s{S_A}, 1\ns_lshl_b32 s{S_T0}, s{S_T0}, 5\ns_and_b32 s{S_T0+1}, s{S_A}, 1\ns_lshl_b32 s{S_T0+1}, s{S_T0+1}, 2\ns_add_u32 s{S_T0}, s{S_T0}, s{S_T0+1}")
    e(f"s_lshl_b32 s{S_WB0}, s{S_T0}, 11\ns_lshl_b32 s{S_T0+1}, s{S_C}, 8\ns_add_u32 s{S_WB0}, s{S_WB0}, s{S_T0+1}")
    e(f"s_lshl_b32 s{S_WB1}, s{S_A}, 15\ns_add_u32 s{S_WB1}, s{S_WB1}, s{S_T0+1}")
    def kc(j):
        e(f"s_lshl_b32 s{S_KC}, s{S_C}, 1\ns_add_u32 s{S_KC}, s{S_KC}, {j}\ns_and_b32 s{S_KC}, s{S_KC}, 15")
    def dma_x(n):
        l, j = divmod(n, 16); slot = n % 4
        kc(j)
        e(f"s_add_u32 m0, s{S_LX}, {LDS_X + slot*16384}")
        if l == 0:
            e(f"s_lshl_b32 s{S_SO}, s{S_KC}, 7\ns_add_u32 s{S_SO}, s{S_SO}, s{S_XB0}")
            for ee in range(4): e.vm_op(f"buffer_load_dwordx4 v{XV0+ee}, s[{SRD_X}:{SRD_X+3}], s{S_SO} offen offset:{ee*1024} lds", ("x",n))
        else:
            e(f"s_lshl_b32 s{S_SO}, s{S_KC}, 14\ns_add_u32 s{S_SO}, s{S_SO}, s{S_XB1}")
            if l == 2: e(f"s_add_u32 s{S_SO}, s{S_SO}, {WS_X2}")
            for ee in range(4): e.vm_op(f"buffer_load_dwordx4 v{XV1}, s[{SRD_WS}:{SRD_WS+3}], s{S_SO} offen offset:{ee*1024}{' sc1' if p.sc1_load else ''} lds".replace("  "," "), ("x",n))
    def dma_w(n):
        l, j = divmod(n, 16); slot = n % 4
        kc(j)
        e(f"s_add_u32 m0, s{S_LX}, {LDS_W + slot*16384}")
        e(f"s_lshl_b32 s{S_SW}, s{S_KC}, 17\ns_add_u32 s{S_SW}, s{S_SW}, s{S_WB0 if l == 0 else S_WB1}")
        if l > 0 and not p.wsame: e(f"s_add_u32 s{S_SW}, s{S_SW}, {l*(2<<20)}")
        wv = WV0 if l == 0 else WV1
        for ee in range(4): e.vm_op(f"buffer_load_dwordx4 v{wv+ee}, s[{SRD_W}:{SRD_W+3}], s{S_SW} offen offset:{ee*1024} lds", ("w",n))
    def dma(n):
        if n > 47: return
        l, j = divmod(n, 16)
        dma_w(n)
        if l == 0 or j >= 4: dma_x(n)
    dma_x(0); dma_w(0)
    e(f"s_min_u32 s{S_T0}, s{S_A}, 2\ns_lshl_b32 s{S_T0+1}, s{S_T0}, 8\ns_add_u32 m0, s{S_T0+1}, {LDS_B}")
    e(f"s_lshl_b32 s{S_T0+1}, s{S_T0}, 11\ns_lshl_b32 s{S_T0+2}, s{S_C}, 8\ns_add_u32 s{S_T0+1}, s{S_T0+1}, s{S_T0+2}")
    e(f"v_lshlrev_b32 v{T}, 2, v0")
    e.vm_op(f"buffer_load_dword v{T}, s[{SRD_B}:{SRD_B+3}], s{S_T0+1} offen lds", ("b",0))
    def prefetch(l):
        e(f"s_lshl_b32 s{S_T0}, s2, 13\ns_lshl_b32 s{S_T0+1}, s{S_A}, 11\ns_add_u32 s{S_T0}, s{S_T0}, s{S_T0+1}\ns_add_u32 s{S_T0}, s{S_T0}, {l*(2<<20)}")
        e(f"s_mov_b32 m0, {LDS_DUMMY}")
        e("s_nop 0")
        for k in range(2): e.vm_op(f"buffer_load_dwordx4 v{XV1}, s[{SRD_W}:{SRD_W+3}], s{S_T0} offen offset:{k*1024} lds", ("pf",l))
    P_pref[0] = prefetch
    if p.pf: prefetch(0)
    dma_x(1); dma_w(1)
    if not p.early:
        dma(2); dma(3)
    e(f"v_and_b32 v{T+1}, 31, v0\nv_lshlrev_b32 v{T+1}, 2, v{T+1}\ns_lshl_b32 s{S_T0}, s{S_G}, 8\ns_add_u32 s{S_T0}, s{S_T0}, {WS_FLAG}\nv_add_u32 v{T+1}, s{S_T0}, v{T+1}")
    e("s_waitcnt lgkmcnt(0)")
    e(f"s_add_u32 s{S_TAG}, s{S_TAG}, {TAGK}")
    if p.stamps: e("v_mov_b32 v30, 0\nv_writelane_b32 v30, s66, 0\nv_writelane_b32 v30, s68, 32")
    stamp(e,p,1,30)
    e.vm_need([("x",0),("w",0),("b",0)])
    stamp(e,p,2,30)
    e("s_barrier")
    if p.early:
        dma(2); dma(3)
    for l in range(3):
        for j in range(16):
            n = 16*l + j
            if l > 0 and j == 0: continue
            if n == 47: continue
            e.vm_need([("x",n+1),("w",n+1)])
            if n in (17,33): stamp(e,p,5+3*(n//16-1),30)
            if p.stage_stamps and n < 16: stamp(e,p,16+n-16+0 if False else 9+0,30) if False else None
            e("s_barrier")
            if j == 0: pass
            elif j == 1: dma(n+3); dma(n+4)
            else: dma(n+4)
            if p.pf and n == 2: P_pref[0](1)
            if p.pf and n == 6: P_pref[0](2)
        if l < 2:
            n1 = 16*(l+1)
            e.vm_need([("w",n1),("w",n1+1)])
            e("s_barrier")
            stamp(e,p,3+3*l,30)
            if not p.nosync:
                e(f"s_mov_b32 s{S_CNT}, {p.poll_max}")
                e.label(f"L_poll{l}")
                e(f"buffer_load_dword v{T+2}, v{T+1}, s[{SRD_WS}:{SRD_WS+3}], 0 offen offset:{l*128} sc1")
                e("s_waitcnt vmcnt(0)")
                e(f"v_cmp_eq_u32 vcc, s{S_TAG}, v{T+2}")
                e("s_nop 1")
                e("s_cmp_eq_u64 vcc, -1")
                e(f"s_cbranch_scc1 L_ok{l}")
                e(f"s_sub_u32 s{S_CNT}, s{S_CNT}, 1\ns_cmp_lg_u32 s{S_CNT}, 0")
                e(f"s_cbranch_scc1 L_poll{l}")
                e.label(f"L_ok{l}")
                e.vm = []
                stamp(e,p,4+3*l,30)
            dma_x(n1+2); dma_x(n1+3)
            if l == 1:
                e(f"s_cmp_eq_u32 s{S_C}, 0\ns_cbranch_scc0 L_nov\ns_cmp_eq_u32 s{S_A}, 0\ns_cbranch_scc0 L_nov")
                e(f"v_mov_b32 v{T+3}, s{S_TAG}\ns_lshl_b32 s{S_T0}, s{S_G}, 7\ns_add_u32 s{S_T0}, s{S_T0}, {WS_V}\nv_mov_b32 v{T+4}, s{S_T0}")
                e(f"buffer_store_dword v{T+3}, v{T+4}, s[{SRD_WS}:{SRD_WS+3}], 0 offen sc1")
                e("s_waitcnt vmcnt(0)")
                e.label("L_nov")
        else:
            e("s_barrier")

def gen_outstore(e, p):
    e.label("L_outstore")
    e("v_and_b32 v1, 63, v0") if False else None
    e(f"v_mbcnt_lo_u32_b32 v1, -1, 0\nv_mbcnt_hi_u32_b32 v1, -1, v1")
    e(f"v_lshrrev_b32 v2, 4, v1\nv_and_b32 v3, 15, v1")
    e(f"s_lshl_b32 s{S_T0}, s{S_WAVE}, 4\nv_add_u32 v4, s{S_T0}, v2")
    e(f"v_lshlrev_b32 v5, 11, v4\nv_lshlrev_b32 v6, 4, v3\nv_add_u32 v5, v5, v6")
    e(f"s_lshl_b32 s{S_T0+1}, s{S_G}, 18\ns_lshl_b32 s{S_T0+2}, s{S_C}, 8\ns_add_u32 s{S_T0+1}, s{S_T0+1}, s{S_T0+2}")
    for i in range(4):
        e(f"v_add_u32 v6, {4*i}, v2\nv_xor_b32 v6, v6, v3\nv_lshlrev_b32 v6, 4, v6\nv_lshlrev_b32 v7, 8, v4\nv_add_u32 v6, v6, v7")
        e(f"ds_read_b128 v[{8+4*i}:{11+4*i}], v6 offset:{i*1024}")
    for i in range(1,4):
        e(f"v_add_u32 v{24+i}, {4*2048*i}, v5")
    e("v_mov_b32 v24, v5")
    for i in range(4):
        e(f"s_waitcnt lgkmcnt({3-i})")
        e(f"buffer_store_dwordx4 v[{8+4*i}:{11+4*i}], v{24+i}, s[{SRD_O}:{SRD_O+3}], s{S_T0+1} offen")
    if p.stamps:
        e("s_waitcnt vmcnt(0)")
        stamp(e,p,15,30)
        stamp_out(e,p,30)
    return

def gen(p=None):
    p = p or P()
    CUR["order"] = p.order
    e = Em()
    hdr = f"""; DCN-v2 cross network, 3 layers fused in one launch.  Generated by my own generator script (gen_k.py).
; @launch grid=(256,1,1) block=(512,1,1) lds={LDS_SIZE}
.amdgcn_target "amdgcn-amd-amdhsa--gfx950"
.text
.globl {KNAME}
.p2align 8
.type {KNAME},@function
{KNAME}:"""
    e(f"s_cmp_ge_u32 s2, 256\ns_cbranch_scc1 L_end")
    if p.stamps:
        e("s_memtime s[66:67]\ns_memrealtime s[68:69]\ns_waitcnt lgkmcnt(0)")
    e("s_load_dwordx4 s[4:7], s[0:1], 0")
    e("s_load_dwordx4 s[36:39], s[0:1], 16")
    e("s_load_dwordx2 s[40:41], s[0:1], 40")
    if p.map2:
        e(f"v_lshrrev_b32 v1, 6, v0\ns_lshr_b32 s{S_C}, s2, 3\ns_and_b32 s{S_C}, s{S_C}, 7")
        e(f"s_lshr_b32 s{S_G}, s2, 6\ns_lshl_b32 s{S_G}, s{S_G}, 3\ns_and_b32 s{S_T0}, s2, 7\ns_add_u32 s{S_G}, s{S_G}, s{S_T0}")
    else:
        e(f"v_lshrrev_b32 v1, 6, v0\ns_and_b32 s{S_G}, s2, 31\ns_lshr_b32 s{S_C}, s2, 5")
    e(f"v_readfirstlane_b32 s{S_WAVE}, v1")
    e("s_waitcnt lgkmcnt(0)")
    def srd(b, lo, size):
        e(f"s_mov_b32 s{b}, s{lo}\ns_mov_b32 s{b+1}, s{lo+1}\ns_mov_b32 s{b+2}, {size}\ns_mov_b32 s{b+3}, 0x00020000")
    srd(SRD_X, 4, 8<<20); srd(SRD_W, 6, 6<<20); srd(SRD_B, 36, 6144); srd(SRD_O, 38, 8<<20); srd(SRD_WS, 40, WS_SIZE)
    e(f"s_lshl_b32 s{S_T0}, s{S_G}, 7\ns_add_u32 s{S_T0}, s{S_T0}, {WS_V}")
    e(f"s_load_dword s{S_TAG}, s[40:41], s{S_T0}")
    e(f"s_cmp_ge_u32 s{S_WAVE}, 4\ns_cbranch_scc1 L_loader")
    gen_compute(e, p)
    gen_loader(e, p)
    gen_outstore(e, p)
    e.label("L_end")
    e("s_endpgm")
    tail = f""".section .rodata,"a"
.p2align 6
.amdhsa_kernel {KNAME}
  .amdhsa_next_free_vgpr 256
  .amdhsa_next_free_sgpr 80
  .amdhsa_accum_offset 256
  .amdhsa_group_segment_fixed_size 0
  .amdhsa_kernarg_size 48
  .amdhsa_user_sgpr_count 2
  .amdhsa_user_sgpr_kernarg_segment_ptr 1
  .amdhsa_system_sgpr_workgroup_id_x 1
.end_amdhsa_kernel
"""
    return hdr + "\n" + e.text() + "\n" + tail

P.pub_gap = 10
P.wsame = False
P.order = 'c'
P.dbl0 = 0
P.map2 = True
P.pf = 1
P.early = True
P.sc1_load = True
P.stage_stamps = False
P.stampreg = 15

if __name__ == "__main__":
    p = P()
    for a in sys.argv[1:]:
        k, v = a.split("=")
        setattr(p, k, eval(v))
    sys.stdout.write(gen(p))
```

```python
import sys

KNAME = "standalone__cross_network_dcn__recsys_kernel"

class P:
    stamps = False; stage_stamps = False; start_stamps = False
    bar_gap = 3; dbl = 0; dbl0 = 0
    prio = 2
    poll_max = 20000
    a_only = 12
    nosync = False
    order = "c"
    mrot = True
    pf = 0
    st_flags = "sc1"
    out_flags = "sc1"
    x_slow = ()
    wbl2 = ()
    wbl2_all = False
    wsame = False
    stampreg = 15
    pub_gap = 3
    force_fast = False
    prewarm = 0
    apoll = 4
    pf_delay = 0
    x1_in_out = False
    loader_first = True
    codepf = False
    bias_late = True
    nostore = False
    ktab = True
    preprep = True
    w_flags = ''
    x0_flags = ''
    x_flags = 'sc1'
    p_early = True
    w0pf = 0
    lspf = 64
    lspf_per = 3
    lspf_start = 1
    lspf_start0 = 6
    spf = 0
    init = 'B'
    early_ops = False
    pf1 = (0,2)
    pf2 = (0,10)
    dbgtime = False
    enc = None
    epi_ilp = True

LDS_X = 0
LDS_W = 65536
LDS_B = 131072
LDS_DUMMY = 131072 + 1024
LDS_SIZE = 131072 + 1024 + 2048
WS_X1 = 0
WS_X2 = 8 << 20
WS_FLAG = 16 << 20
WS_FLAGB = (16 << 20) + 0x8000
WS_V = (16 << 20) + 0x10000
WS_XC = (16 << 20) + 0x18000
WS_STAMP = (17 << 20)
WS_SIZE = (18 << 20)
TAGK = 0x6A09E667
TAGX = 0x3C6EF372

class Em:
    def __init__(s):
        s.L = []; s.lds = []; s.vm = []
    def __call__(s, t):
        for x in t.split("\n"):
            x = x.strip()
            if x: s.L.append("    " + x if not x.endswith(":") else x)
    def label(s, n): s.L.append(n + ":")
    def lds_op(s, text, dst=()):
        s(text); s.lds.append(set(dst))
    def need(s, regs):
        regs = set(regs); last = -1
        for i, d in enumerate(s.lds):
            if d & regs: last = i
        if last >= 0:
            n = min(len(s.lds) - 1 - last, 15)
            s(f"s_waitcnt lgkmcnt({n})")
            s.lds = s.lds[len(s.lds)-n:] if n else []
    def lds_all(s):
        if s.lds: s("s_waitcnt lgkmcnt(0)")
        s.lds = []
    def vm_op(s, text, tag):
        s(text); s.vm.append(tag)
    def vm_need(s, tags):
        last = -1
        for i, t in enumerate(s.vm):
            if t in tags: last = i
        if last >= 0:
            n = len(s.vm) - 1 - last
            assert n <= 63, n
            s(f"s_waitcnt vmcnt({n})")
            s.vm = s.vm[last+1:]
    def vm_all(s):
        s("s_waitcnt vmcnt(0)"); s.vm = []
    def text(s): return "\n".join(s.L)

def R(a, n): return list(range(a, a+n))
def vr(a, n): return f"v[{a}:{a+n-1}]" if n > 1 else f"v{a}"

V_LANE = 0
V_XA0, V_XA1 = 1, 2
V_WA = 3
V_LW = 7
V_L16 = 8
V_FO = 9; V_FD = 10
V_T = 11
ACC = 16; FR = 80; X0F = 144; RES = 208; BIAS = 240
def acc(rt, ct): return ACC + (rt*4+ct)*4
def xfr(st, rt): return FR + st*32 + rt*4
def wfr(st, ct): return FR + st*32 + 16 + ct*4
def x0f(rt, ct): return X0F + (rt*4+ct)*4
def res(rt, ct): return RES + (rt*4+ct)*2

SNAKE_R = [(rt, ct) for rt in range(4) for ct in (range(4) if rt % 2 == 0 else range(3, -1, -1))]
SNAKE_C = [(rt, ct) for ct in range(4) for rt in (range(4) if ct % 2 == 0 else range(3, -1, -1))]
ORDER = {"r": SNAKE_R, "c": SNAKE_C}
CUR = {"order": "c"}

S_WAVE=3
SRD_X=8; SRD_W=12; SRD_WS=16; SRD_O=20; SRD_B=24
S_G=28; S_C=29; S_A=30; S_B2=31
S_TAG=32; S_MASK=33
S_T0=34
S_XB0=48; S_XB1=49; S_WB0=51; S_WB1=52; S_LX=53; S_KC=54; S_SO=55; S_SW=56; S_CNT=57
S_FB=59; S_STO=60; S_STO2=61
S_RDY=70; S_NEED=71; S_OFF=72; S_PO=73; S_FAST=74; S_XT=75; S_NEED2=76; S_PF=77; S_SW2=78; S_SWB=46; S_PB=96; S_SWB2=50; S_SO2=100; S_TAB=98; S_WBL=79; S_XBL=58

LSR = 60
def stamp(e, p, idx, reg=None):
    if not p.stamps: return
    reg = reg or p.stampreg
    e(f"s_memtime s[62:63]\ns_memrealtime s[64:65]\ns_waitcnt lgkmcnt(0)\nv_writelane_b32 v{reg}, s62, {idx}\nv_writelane_b32 v{reg}, s64, {idx+32}")
    e.lds = []
def stamp_out(e, p, reg):
    if not p.stamps: return
    e(f"s_lshl_b32 s62, s2, 3\ns_add_u32 s62, s62, s{S_WAVE}\ns_lshl_b32 s62, s62, 8\ns_add_u32 s62, s62, {WS_STAMP}")
    e(f"v_mbcnt_lo_u32_b32 v40, -1, 0\nv_mbcnt_hi_u32_b32 v40, -1, v40\nv_lshlrev_b32 v40, 2, v40")
    e(f"buffer_store_dword v{reg}, v40, s[{SRD_WS}:{SRD_WS+3}], s62 offen")

def srd(e, b, lo, size):
    e(f"s_mov_b32 s{b}, s{lo}\ns_mov_b32 s{b+1}, s{lo+1}\ns_mov_b32 s{b+2}, {size}\ns_mov_b32 s{b+3}, 0x00020000")

def xread(e, st, rt, u, slot):
    r = xfr(st, rt)
    e.lds_op(f"ds_read_b128 {vr(r,4)}, v{V_XA0+u} offset:{slot*16384 + rt*2048}", R(r,4))
def wread(e, st, ct, u, h, slot):
    r = wfr(st, ct) + 2*h
    e.lds_op(f"ds_read_b64_tr_b16 {vr(r,2)}, v{V_WA+ct} offset:{slot*16384 + u*8192 + h*4096}", R(r,2))

def frag_reads(st, u, slot, only=None):
    def W(ct,h): return lambda e: wread(e, st, ct, u, h, slot)
    def X(rt): return lambda e: xread(e, st, rt, u, slot)
    if CUR["order"] == "r":
        seq = [("w",W(0,0)),("w",W(0,1)),("x",X(0)),("w",W(1,0)),("w",W(1,1)),("w",W(2,0)),("w",W(2,1)),
               ("w",W(3,0)),("w",W(3,1)),("x",X(1)),("x",X(2)),("x",X(3))]
    else:
        seq = [("w",W(0,0)),("w",W(0,1)),("x",X(0)),("x",X(1)),("x",X(2)),("x",X(3)),("w",W(1,0)),("w",W(1,1)),
               ("w",W(2,0)),("w",W(2,1)),("w",W(3,0)),("w",W(3,1))]
    return [f for k,f in seq if only is None or k == only]

def step(e, p, st, fills, first=False):
    for m,(rt,ct) in enumerate(ORDER[CUR['order']]):
        a = acc(rt,ct); w = wfr(st,ct); x = xfr(st,rt)
        e.need(R(w,4)+R(x,4))
        c = BIAS+ct*4 if first else a
        e(f"v_mfma_f32_16x16x32_bf16 {vr(a,4)}, {vr(w,4)}, {vr(x,4)}, {vr(c,4)}")
        for f in fills.get(m, []): f(e)

def spread(items, start, end, dbl=0):
    d = {}; g = start; i = 0
    while i < len(items):
        n = 2 if (g - start) < dbl else 1
        for k in range(n):
            if i < len(items): d.setdefault(min(g, end), []).append(items[i]); i += 1
        g += 1
    return d
def merge(*ds):
    o = {}
    for d in ds:
        for k,v in d.items(): o.setdefault(k, []).extend(v)
    return o

def gen_compute(e, p):
    e.label("L_compute")
    e(f"s_and_b32 s{S_B2}, s{S_WAVE}, 1\ns_lshr_b32 s{S_A}, s{S_WAVE}, 1")
    e(f"s_setprio {p.prio}")
    T=V_T
    e(f"v_and_b32 v{V_LANE}, 63, v0")
    e(f"v_and_b32 v{T}, 15, v{V_LANE}")
    e(f"v_lshrrev_b32 v{T+1}, 4, v{V_LANE}")
    e(f"v_lshrrev_b32 v{T+2}, 1, v{T}")
    e(f"v_xor_b32 v{T+3}, v{T+2}, v{T+1}\nv_lshlrev_b32 v{T+3}, 4, v{T+3}")
    e(f"v_lshlrev_b32 v{T+4}, 7, v{T}\nv_add_u32 v{T+3}, v{T+3}, v{T+4}")
    e(f"s_lshl_b32 s{S_T0}, s{S_A}, 13")
    e(f"v_add_u32 v{V_XA0}, s{S_T0}, v{T+3}\nv_xor_b32 v{V_XA1}, 64, v{V_XA0}")
    e(f"v_lshrrev_b32 v{T+3}, 1, v{T+1}\nv_xor_b32 v{T+3}, v{T+3}, v{T+2}\nv_lshlrev_b32 v{T+3}, 4, v{T+3}")
    e(f"v_add_u32 v{T+3}, v{T+3}, v{T+4}\nv_and_b32 v{T+4}, 1, v{T+1}\nv_lshlrev_b32 v{T+4}, 3, v{T+4}\nv_add_u32 v{T+3}, v{T+3}, v{T+4}")
    e(f"s_lshl_b32 s{S_T0+1}, s{S_B2}, 14\ns_add_u32 s{S_T0+1}, s{S_T0+1}, s{S_T0}")
    e(f"v_add_u32 v{V_LW}, s{S_T0+1}, v{T+3}")
    e(f"v_lshrrev_b32 v{T+2}, 2, v{T}\nv_lshlrev_b32 v{T+3}, 2, v{T+1}\nv_add_u32 v{T+2}, v{T+2}, v{T+3}")
    e(f"v_and_b32 v{T+3}, 7, v{T+2}")
    e(f"v_lshlrev_b32 v{T+2}, 8, v{T+2}\nv_and_b32 v{T+4}, 3, v{T}\nv_lshlrev_b32 v{T+4}, 3, v{T+4}\nv_add_u32 v{T+2}, v{T+2}, v{T+4}")
    e(f"v_add_u32 v{T+2}, {LDS_W}, v{T+2}")
    e(f"s_lshl_b32 s{S_T0+2}, s{S_B2}, 2")
    for ct in range(4):
        e(f"s_add_u32 s{S_T0+3}, s{S_T0+2}, {ct}\nv_xor_b32 v{T+4}, s{S_T0+3}, v{T+3}\nv_lshlrev_b32 v{T+4}, 5, v{T+4}\nv_add_u32 v{V_WA+ct}, v{T+2}, v{T+4}")
    e(f"v_lshlrev_b32 v{V_L16}, 4, v{V_LANE}")
    e(f"s_mov_b32 s{S_MASK}, 0xffff0000")
    e(f"s_lshl_b32 s{S_T0+3}, s{S_G}, 8\ns_lshl_b32 s{S_T0+4}, s{S_C}, 4\ns_add_u32 s{S_T0+3}, s{S_T0+3}, s{S_T0+4}")
    e(f"s_lshl_b32 s{S_T0+4}, s{S_WAVE}, 2\ns_add_u32 s{S_T0+3}, s{S_T0+3}, s{S_T0+4}\ns_add_u32 s{S_T0+3}, s{S_T0+3}, {WS_FLAG}")
    e(f"v_mov_b32 v{V_FO}, 0x7ffffff0\nv_mov_b32 v{T+4}, s{S_T0+3}\nv_cmp_eq_u32 vcc, 0, v{V_LANE}\ns_nop 1\nv_cndmask_b32 v{V_FO}, v{V_FO}, v{T+4}, vcc")
    e(f"s_mov_b32 s{S_FB}, {WS_FLAGB-WS_FLAG}")
    e(f"s_lshl_b32 s{S_STO}, s{S_G}, 18\ns_lshl_b32 s{S_T0+3}, s{S_C}, 15\ns_add_u32 s{S_STO}, s{S_STO}, s{S_T0+3}\ns_add_u32 s{S_STO}, s{S_STO}, s{S_T0+1}")
    e(f"s_add_u32 s{S_STO2}, s{S_STO}, 4096")
    e("s_waitcnt lgkmcnt(0)"); srd(e, SRD_WS, 40, WS_SIZE); srd(e, SRD_W, 6, 6<<20)
    e(f"s_lshl_b32 s{S_T0}, s{S_G}, 7\ns_add_u32 s{S_T0}, s{S_T0}, {WS_V}")
    e(f"s_load_dword s{S_TAG}, s[40:41], s{S_T0}")
    e(f"s_lshl_b32 s{S_PF}, s2, 13\ns_lshl_b32 s{S_T0}, s{S_WAVE}, 11\ns_add_u32 s{S_PF}, s{S_PF}, s{S_T0}")
    def prefetch(l, k):
        def f(e):
            e(f"s_add_u32 s{S_T0}, s{S_PF}, {l*(2<<20)}\ns_mov_b32 m0, {LDS_DUMMY}")
            e("s_nop 0")
            e(f"buffer_load_dwordx4 v{V_L16}, s[{SRD_W}:{SRD_W+3}], s{S_T0} offen offset:{k*1024} lds")
        return f
    srd(e, SRD_O, 42, 8<<20)
    e(f"s_getreg_b32 s{S_XT}, hwreg(HW_REG_XCC_ID, 0, 4)")
    e("s_waitcnt lgkmcnt(0)")
    e(f"s_add_u32 s{S_XT}, s{S_XT}, s{S_TAG}\ns_add_u32 s{S_XT}, s{S_XT}, {TAGX}")
    e(f"s_add_u32 s{S_TAG}, s{S_TAG}, {TAGK}\nv_mov_b32 v{V_FD}, s{S_TAG}")
    def op_xc(e):
        e(f"s_lshl_b32 s{S_T0}, s{S_G}, 7\ns_lshl_b32 s{S_T0+1}, s{S_C}, 2\ns_add_u32 s{S_T0}, s{S_T0}, s{S_T0+1}\ns_add_u32 s{S_T0}, s{S_T0}, {WS_XC}")
        e(f"v_mov_b32 v{T+2}, 0x7ffffff0\nv_mov_b32 v{T+3}, s{S_T0}\nv_cmp_eq_u32 vcc, 0, v{V_LANE}\ns_nop 1\nv_cndmask_b32 v{T+2}, v{T+2}, v{T+3}, vcc\nv_mov_b32 v{T+3}, s{S_XT}")
        e(f"buffer_store_dword v{T+3}, v{T+2}, s[{SRD_WS}:{SRD_WS+3}], 0 offen sc1")
    def op_touch(e):
        e(f"s_lshl_b32 s{S_T0}, s{S_G}, 8\ns_add_u32 s{S_T0}, s{S_T0}, {WS_FLAG}\nv_lshlrev_b32 v{T+2}, 2, v{V_LANE}")
        e(f"s_mov_b32 m0, {LDS_DUMMY}\ns_nop 0")
        e(f"buffer_load_dword v{T+2}, s[{SRD_WS}:{SRD_WS+3}], s{S_T0} offen sc1 lds")
    if p.spf:
        e(f"s_add_u32 s46, s6, s{S_PF}\ns_addc_u32 s47, s7, 0")
        for k in range(2048 // p.spf):
            e(f"s_load_dword s{80 + k % 16}, s[{S_PB}:{S_PB+1}], {k * p.spf}")
    early_ops = [op_xc, op_touch] + ([prefetch(0,0), prefetch(0,1)] if p.pf and not p.spf else [])
    if p.early_ops:
        for f in early_ops: f(e)

    def bias_reads(l):
        def f0(e):
            e(f"v_lshrrev_b32 v{T}, 4, v{V_LANE}\nv_lshlrev_b32 v{T}, 3, v{T}\ns_lshl_b32 s{S_T0}, s{S_B2}, 7\ns_add_u32 s{S_T0}, s{S_T0}, {LDS_B}\nv_add_u32 v{T}, s{S_T0}, v{T}")
        out=[f0]
        for ct in range(4):
            r = BIAS+ct*4+2
            out.append(lambda e, ct=ct, r=r: e.lds_op(f"ds_read_b64 {vr(r,2)}, v{T} offset:{l*256 + ct*32}", R(r,2)))
        return out
    def bias_unpack():
        out=[]
        for ct in range(4):
            b = BIAS+ct*4
            def f(e, b=b):
                e.need(R(b+2,2))
                e(f"v_lshlrev_b32 v{b}, 16, v{b+2}\nv_and_b32 v{b+1}, s{S_MASK}, v{b+2}")
                e(f"v_lshlrev_b32 v{b+2}, 16, v{b+3}\nv_and_b32 v{b+3}, s{S_MASK}, v{b+3}")
            out.append(f)
        return out

    if p.stamps: e("v_mov_b32 v15, 0\nv_writelane_b32 v15, s66, 0\nv_writelane_b32 v15, s68, 32")
    if p.spf: e("s_waitcnt lgkmcnt(0)")
    stamp(e,p,1)
    e("s_barrier")
    stamp(e,p,2)
    for f in bias_reads(0): f(e)
    for f in frag_reads(0,0,0): f(e)
    for f in bias_unpack(): f(e)
    for k in range(16): e(f"v_add_f32 v{BIAS+k}, 1.0, v{BIAS+k}")
    e("s_nop 1")
    unpack_q = []
    order = ORDER[CUR['order']]
    def place_adds(q, gaps):
        d = {}
        for g in gaps:
            for i,(m,f) in enumerate(q):
                if 8 <= (g - m) % 16 <= 13:
                    d.setdefault(g, []).append(f); q.pop(i); break
        return d
    for l in range(3):
        add_q = []
        for j in range(16):
            n = 16*l + j; slot = n % 4
            fills = spread(frag_reads(1,1,slot), 0, 15, dbl=p.dbl0)
            extra = {}
            if l == 0 and j == 1:
                items = []
                for ct in range(4):
                    items.append(lambda e, ct=ct: e(f"v_xor_b32 v{T+ct}, {ct*32}, v{V_LW}"))
                for rt in range(4):
                    for ct in range(4):
                        r = res(rt,ct)
                        items.append(lambda e, rt=rt, ct=ct, r=r: e.lds_op(f"ds_read_b64 {vr(r,2)}, v{T+ct} offset:{rt*2048}", R(r,2)))
                k=0
                for g in range(16):
                    extra[g] = items[k:k+2] if g < 4 else items[k:k+1]
                    k += len(extra[g])
                assert k == len(items)
                for rt in range(4):
                    for ct in range(4):
                        for d in range(2):
                            def f(e, rt=rt, ct=ct, d=d):
                                r = res(rt,ct)+d; x = x0f(rt,ct)+2*d
                                e.need([r])
                                e(f"v_lshlrev_b32 v{x}, 16, v{r}\nv_and_b32 v{x+1}, s{S_MASK}, v{r}")
                            unpack_q.append(f)
            if l == 0 and j == 6:
                def xc_load(e):
                    e(f"v_and_b32 v{T}, 7, v{V_LANE}\nv_lshlrev_b32 v{T}, 2, v{T}\ns_lshl_b32 s{S_T0}, s{S_G}, 7\ns_add_u32 s{S_T0}, s{S_T0}, {WS_XC}")
                    e(f"buffer_load_dword v{T+1}, v{T}, s[{SRD_WS}:{SRD_WS+3}], s{S_T0} offen sc1")
                extra = merge(extra, {13:[xc_load]})
            if l == 0 and j == 8:
                def xc_test(e):
                    e("s_waitcnt vmcnt(0)")
                    e(f"v_cmp_eq_u32 vcc, s{S_XT}, v{T+1}")
                    e("s_nop 1")
                    e(f"s_cmp_eq_u64 vcc, -1\ns_cselect_b32 s{S_FAST}, 1, 0")
                    if p.force_fast is not None: e(f"s_mov_b32 s{S_FAST}, {int(p.force_fast)}")
                extra = merge(extra, {13:[xc_test]})
            if l == 0 and j == 0 and not p.early_ops:
                extra = merge(extra, {2:[early_ops[-1]], 6:[early_ops[-2]], 10:[early_ops[0]], 14:[early_ops[1]]} if len(early_ops) == 4 else {4:[early_ops[0]], 10:[early_ops[1]]})
            if p.pf:
                for L_, (pl, pj) in ((1, p.pf1), (2, p.pf2)):
                    if l == pl and j in (pj, pj+1): extra = merge(extra, {14:[prefetch(L_, j-pj)]})
            if p.prewarm == 1 and l < 2 and 5 <= j <= 12:
                def pw(e, k=j-5, l=l):
                    so = S_STO if k < 4 else S_STO2
                    e(f"s_cmp_eq_u32 s{S_FAST}, 0\ns_cbranch_scc1 L_nopw{l}_{k}")
                    e(f"buffer_store_dwordx4 {vr(RES,4)}, v{V_L16}, s[{SRD_WS}:{SRD_WS+3}], s{so} offen offset:{(k%4)*1024}")
                    e.label(f"L_nopw{l}_{k}")
                extra = merge(extra, {14:[pw]})
            if p.prewarm in (2,3) and l < 2 and j in ((6,) if p.prewarm == 2 else (6,8)):
                def pw(e, k=(j-6)//2, l=l):
                    e(f"s_cmp_eq_u32 s{S_FAST}, 0\ns_cbranch_scc1 L_nopw{l}_{k}")
                    e(f"v_lshlrev_b32 v{T+2}, 7, v{V_LANE}")
                    e(f"buffer_store_dword v{T+2}, v{T+2}, s[{SRD_WS}:{SRD_WS+3}], s{S_STO} offen offset:{k*64}")
                    e.label(f"L_nopw{l}_{k}")
                extra = merge(extra, {14:[pw]})
            if p.prewarm in (4,5) and l < 2 and j in ((6,) if p.prewarm == 4 else (6,8)):
                def pw(e, k=(j-6)//2, l=l):
                    e(f"v_lshlrev_b32 v{T+2}, 7, v{V_LANE}")
                    e(f"buffer_load_dword v{T+3}, v{T+2}, s[{SRD_WS}:{SRD_WS+3}], s{S_STO} offen offset:{k*64}")
                extra = merge(extra, {14:[pw]})
            if (l, j) in p.wbl2:
                def wb(e, l=l, j=j):
                    e(f"s_cmp_eq_u32 s{S_WAVE}, 0\ns_cbranch_scc0 L_nwb{l}_{j}")
                    if not p.wbl2_all: e(f"s_cmp_eq_u32 s{S_C}, 0\ns_cbranch_scc0 L_nwb{l}_{j}")
                    e("buffer_wbl2 sc1")
                    e.label(f"L_nwb{l}_{j}")
                extra = merge(extra, {14:[wb]})
            if l > 0 and j == 0:
                def pub(e, l=l):
                    e("s_waitcnt vmcnt(0)")
                    stamp(e, p, 10+l)
                    e(f"buffer_store_dword v{V_FD}, v{V_FO}, s[{SRD_WS}:{SRD_WS+3}], 0 offen offset:{(l-1)*128}")
                    e(f"buffer_store_dword v{V_FD}, v{V_FO}, s[{SRD_WS}:{SRD_WS+3}], s{S_FB} offen offset:{(l-1)*128} sc1")
                extra = merge(extra, {p.pub_gap: [pub]})
            if p.bias_late and l > 0:
                if j == 2:
                    br = bias_reads(l)
                    extra = merge(extra, {11:[br[0]], 12:[br[1], br[2]], 13:[br[3], br[4]]})
                if j == 3:
                    bu = bias_unpack()
                    extra = merge(extra, {12+i:[f] for i,f in enumerate(bu)})
                    for r in range(4):
                        for m,(rt,ct) in enumerate(order):
                            add_q.append((m, lambda e, rt=rt, ct=ct, r=r: e(f"v_add_f32 v{acc(rt,ct)+r}, v{BIAS+ct*4+r}, v{acc(rt,ct)+r}")))
                elif j >= 4 and add_q:
                    extra = merge(extra, place_adds(add_q, [12,12,13,13,14,14,15,15]))
            if l == 0 and j >= 3 and unpack_q:
                items = unpack_q[:4]; unpack_q = unpack_q[4:]
                extra = merge(extra, {12+i:[it] for i,it in enumerate(items)})
            step(e, p, 0, merge(fills, extra), first=(l == 0 and j == 0))
            fills = {}
            barrier = not (l > 0 and j == 0) and not (n == 47)
            start = 0
            if barrier:
                def bar(e, n=n):
                    e.lds_all(); e("s_barrier")
                    if n in (17, 33): stamp(e, p, 5 + 3*(n//16 - 1))
                fills = {p.bar_gap: [bar]}
                start = p.bar_gap + 1
            if j < 15:
                fills = merge(fills, spread(frag_reads(0,0,(n+1)%4), start, 15, dbl=p.dbl if barrier else 0))
            elif l < 2:
                items = frag_reads(0,0,(n+1)%4, only="w") + ([] if p.bias_late else bias_reads(l+1))
                fills = merge(fills, spread(items, start, 15, dbl=2))
            if p.bias_late and l > 0 and j >= 4 and add_q:
                fills = merge(fills, place_adds(add_q, [0,1,2,5,6,7]))
            if l == 0 and j >= 3 and unpack_q:
                items = unpack_q[:2]; unpack_q = unpack_q[2:]
                fills = merge(fills, {i:[it] for i,it in enumerate(items)})
            step(e, p, 1, fills)
        assert not unpack_q and not add_q, len(add_q)
        stamp(e,p,3+3*l)
        e("s_nop 7")
        TE = FR + 32
        if l == 0:
            e(f"s_lshl_b32 s{S_T0}, s{S_A}, 13\nv_add_u32 v{V_XA0}, s{S_T0}, v{V_L16}\nv_add_u32 v{V_XA1}, 1024, v{V_XA0}")
            e(f"s_lshl_b32 s{S_T0+1}, s{S_B2}, 14\ns_add_u32 s{S_T0+1}, s{S_T0+1}, s{S_T0}\nv_add_u32 v{V_LW}, s{S_T0+1}, v{V_L16}")
        if l == 2:
            e(f"v_and_b32 v{T}, 15, v{V_LANE}\nv_lshrrev_b32 v{T+1}, 4, v{V_LANE}")
            e(f"v_lshrrev_b32 v{T+2}, 1, v{T+1}\ns_lshl_b32 s{S_T0}, s{S_B2}, 3\nv_add_u32 v{T+2}, s{S_T0}, v{T+2}\nv_xor_b32 v{T+2}, v{T+2}, v{T}\nv_lshlrev_b32 v{T+2}, 4, v{T+2}")
            e(f"v_and_b32 v{T+3}, 1, v{T+1}\nv_lshlrev_b32 v{T+3}, 3, v{T+3}\nv_add_u32 v{T+2}, v{T+2}, v{T+3}")
            e(f"v_lshlrev_b32 v{T+3}, 8, v{T}\nv_add_u32 v{T+2}, v{T+2}, v{T+3}\ns_lshl_b32 s{S_T0}, s{S_A}, 14\nv_add_u32 v{V_LW}, s{S_T0}, v{T+2}")
            for ct in range(4): e(f"v_xor_b32 v{T+ct}, {ct*32}, v{V_LW}")
        def epi_body(flav):
            for rt in range(4):
                for t in range(2):
                    prs = []
                    for d in range(4):
                        ct = 2*t + d//2; dd = d % 2
                        k = (rt*2+t)*4+d
                        prs.append((TE + 2*(k % 16), res(rt,ct)+dd, acc(rt,ct)+2*dd, x0f(rt,ct)+2*dd))
                    for tm,r,a_,x in prs: e(f"v_pk_mul_f32 {vr(tm,2)}, {vr(x,2)}, {vr(a_,2)}")
                    for tm,r,a_,x in prs: e(f"v_cvt_pk_bf16_f32 v{r}, v{tm}, v{tm+1}")
                    r = res(rt,2*t)
                    if l < 2:
                        so = S_STO if rt < 2 else S_STO2
                        sd = SRD_O if (l == 0 and p.x1_in_out) else SRD_WS
                        if not p.nostore: e(f"buffer_store_dwordx4 {vr(r,4)}, v{V_L16}, s[{sd}:{sd+3}], s{so} offen offset:{(rt%2)*2048+t*1024} {flav}")
                        e.lds_op(f"ds_write_b128 v{V_LW}, {vr(r,4)} offset:{rt*2048+t*1024}")
                    else:
                        for c2 in range(2):
                            ct = 2*t+c2
                            e.lds_op(f"ds_write_b64 v{T+ct}, {vr(res(rt,ct),2)} offset:{rt*4096}")
        if l < 2:
            if l in p.x_slow:
                epi_body("sc1")
            else:
                saved = list(e.lds)
                e(f"s_cmp_eq_u32 s{S_FAST}, 0\ns_cbranch_scc1 L_slow{l}")
                epi_body("")
                e(f"s_branch L_join{l}")
                after = list(e.lds); e.lds = saved
                e.label(f"L_slow{l}")
                epi_body("sc1")
                assert len(e.lds) == len(after)
                e.label(f"L_join{l}")
            e(f"s_add_u32 s{S_STO}, s{S_STO}, {WS_X2-WS_X1}\ns_add_u32 s{S_STO2}, s{S_STO2}, {WS_X2-WS_X1}")
        else:
            epi_body("")
        if l < 2:
            if not p.bias_late:
                for f in bias_unpack(): f(e)
                for rt in range(4):
                    for ct in range(4):
                        for h in range(2):
                            e(f"v_pk_add_f32 {vr(acc(rt,ct)+2*h,2)}, {vr(acc(rt,ct)+2*h,2)}, {vr(BIAS+ct*4+2*h,2)}")
            e.lds_all()
            stamp(e,p,4+3*l)
            e("s_barrier")
            for f in frag_reads(0,0,0, only="x"): f(e)
            e("s_nop 1")
        else:
            e.lds_all()
            stamp(e,p,4+3*l)
            e("s_barrier")
    if p.stamps: e("v_mov_b32 v60, v15")
    e("s_branch L_outstore")

def gen_loader(e, p):
    e.label("L_loader")
    XV0=1; XV1=5; WV0=6; WV1=10; T=14; VF=20; VD=24
    e(f"s_sub_u32 s{S_A}, s{S_WAVE}, 4")
    e("v_and_b32 v0, 63, v0")
    e(f"v_lshrrev_b32 v{T}, 3, v0\nv_and_b32 v{T+1}, 7, v0\nv_lshrrev_b32 v{T+2}, 4, v0")
    e(f"v_xor_b32 v{T+3}, v{T+1}, v{T+2}\nv_lshlrev_b32 v{T+3}, 4, v{T+3}\nv_lshlrev_b32 v{T+4}, 11, v{T}\nv_add_u32 v{XV0}, v{T+3}, v{T+4}")
    e(f"v_xor_b32 v{T+3}, 64, v{XV0}")
    e(f"v_add_u32 v{XV0+1}, {8*2048-1024}, v{T+3}\nv_add_u32 v{XV0+2}, {16*2048-2048}, v{XV0}\nv_add_u32 v{XV0+3}, {24*2048-3072}, v{T+3}")
    e(f"v_bfe_u32 v{T+3}, v0, 1, 3\nv_xor_b32 v{T+3}, v{T+3}, v{T+2}\nv_lshlrev_b32 v{T+3}, 5, v{T+3}")
    e(f"v_and_b32 v{T+4}, 1, v0\nv_lshlrev_b32 v{T+4}, 4, v{T+4}\nv_add_u32 v{T+3}, v{T+3}, v{T+4}")
    e(f"v_lshlrev_b32 v{T+4}, 11, v{T+2}\nv_add_u32 v{WV0}, v{T+3}, v{T+4}")
    e(f"v_xor_b32 v{T+3}, 128, v{WV0}")
    e(f"v_add_u32 v{WV0+1}, {8*2048-1024}, v{T+3}\nv_add_u32 v{WV0+2}, {16*2048-2048}, v{WV0}\nv_add_u32 v{WV0+3}, {24*2048-3072}, v{T+3}")
    e(f"s_lshl_b32 s{S_XB0}, s{S_G}, 18\ns_lshl_b32 s{S_T0}, s{S_A}, 16\ns_add_u32 s{S_XB0}, s{S_XB0}, s{S_T0}")
    e(f"s_lshl_b32 s{S_LX}, s{S_A}, 12")
    e(f"s_lshr_b32 s{S_T0}, s{S_A}, 1\ns_lshl_b32 s{S_T0}, s{S_T0}, 5\ns_and_b32 s{S_T0+1}, s{S_A}, 1\ns_lshl_b32 s{S_T0+1}, s{S_T0+1}, 2\ns_add_u32 s{S_T0}, s{S_T0}, s{S_T0+1}")
    e(f"s_lshl_b32 s{S_WB0}, s{S_T0}, 11\ns_lshl_b32 s{S_T0+1}, s{S_C}, 8\ns_add_u32 s{S_WB0}, s{S_WB0}, s{S_T0+1}")
    tab_ready = [False]
    def kc_slow(j):
        if j < 2 or not p.mrot:
            e(f"s_lshl_b32 s{S_KC}, s{S_C}, 1\ns_add_u32 s{S_KC}, s{S_KC}, {j}\ns_and_b32 s{S_KC}, s{S_KC}, 15")
        else:
            e(f"s_add_u32 s{S_KC}, s{S_OFF}, {j-2}\ns_cmp_ge_u32 s{S_KC}, 14\ns_cselect_b32 s{S_T0+5}, 14, 0\ns_sub_u32 s{S_KC}, s{S_KC}, s{S_T0+5}")
            e(f"s_lshl_b32 s{S_T0+5}, s{S_C}, 1\ns_add_u32 s{S_KC}, s{S_KC}, s{S_T0+5}\ns_add_u32 s{S_KC}, s{S_KC}, 2\ns_and_b32 s{S_KC}, s{S_KC}, 15")
    def build_tab():
        e(f"s_mov_b32 s{S_TAB}, 0\ns_mov_b32 s{S_TAB+1}, 0")
        for j in range(16):
            kc_slow(j)
            e(f"s_lshl_b32 s{S_KC}, s{S_KC}, {4*(j%8)}\ns_or_b32 s{S_TAB+j//8}, s{S_TAB+j//8}, s{S_KC}")
        tab_ready[0] = True
    def kc(j):
        if tab_ready[0] and p.ktab: e(f"s_bfe_u32 s{S_KC}, s{S_TAB+j//8}, {(4 << 16) | (4*(j%8))}")
        else: kc_slow(j)
    def need_mask(dst):
        e(f"s_lshr_b32 s{dst}, s{S_KC}, 1\ns_lshl_b32 s{dst}, s{dst}, 2\ns_and_b32 s{S_T0+5}, s{S_KC}, 1\ns_add_u32 s{dst}, s{dst}, s{S_T0+5}")
        e(f"s_lshl_b32 s{dst}, 5, s{dst}")
    def ensure(n, also=None):
        l = n // 16
        if p.nosync: return
        if also is None and p.ktab:
            e(f"s_cmp_eq_u32 s{S_RDY}, -1\ns_cbranch_scc1 L_ok{n}")
        if also is not None:
            kc(also % 16); need_mask(S_NEED2)
        kc(n % 16); need_mask(S_NEED)
        if also is not None: e(f"s_or_b32 s{S_NEED}, s{S_NEED}, s{S_NEED2}")
        e(f"s_and_b32 s{S_T0+5}, s{S_RDY}, s{S_NEED}\ns_cmp_eq_u32 s{S_T0+5}, s{S_NEED}\ns_cbranch_scc1 L_ok{n}")
        e(f"s_mov_b32 s{S_CNT}, 0")
        e.label(f"L_poll{n}")
        e(f"s_cmp_ge_u32 s{S_CNT}, {p.a_only}\ns_cselect_b32 s{S_T0+5}, 1, 0\ns_and_b32 s{S_T0+5}, s{S_T0+5}, s{S_CNT}\ns_mul_i32 s{S_PO}, s{S_T0+5}, {WS_FLAGB-WS_FLAG}")
        e(f"buffer_load_dword v{T+2}, v{T+1}, s[{SRD_WS}:{SRD_WS+3}], s{S_PO} offen offset:{(l-1)*128} sc1")
        e("s_waitcnt vmcnt(0)")
        e(f"v_cmp_eq_u32 vcc, s{S_TAG}, v{T+2}")
        e("s_nop 1")
        e(f"s_or_b32 s{S_RDY}, s{S_RDY}, vcc_lo")
        e(f"s_and_b32 s{S_T0+5}, s{S_RDY}, s{S_NEED}\ns_cmp_eq_u32 s{S_T0+5}, s{S_NEED}\ns_cbranch_scc1 L_ok{n}")
        e(f"s_add_u32 s{S_CNT}, s{S_CNT}, 1\ns_cmp_lg_u32 s{S_CNT}, {p.poll_max}")
        e(f"s_cbranch_scc1 L_poll{n}")
        e.label(f"L_ok{n}")
    def poll_async(l, tag):
        if p.nosync: return
        e.vm_op(f"buffer_load_dword v{T+5}, v{T+1}, s[{SRD_WS}:{SRD_WS+3}], 0 offen offset:{(l-1)*128} sc1", tag)
    def poll_collect(tag):
        if p.nosync: return
        e.vm_need([tag])
        e(f"v_cmp_eq_u32 vcc, s{S_TAG}, v{T+5}")
        e("s_nop 1")
        e(f"s_or_b32 s{S_RDY}, s{S_RDY}, vcc_lo")
    def prep_x(n, checked=False, have_kc=False, so=None):
        l, j = divmod(n, 16); so = so or S_SO
        if l > 0 and not checked: ensure(n)
        elif not have_kc: kc(j)
        if l == 0:
            e(f"s_lshl_b32 s{so}, s{S_KC}, 7\ns_add_u32 s{so}, s{so}, s{S_XB0}")
        else:
            e(f"s_lshl_b32 s{so}, s{S_KC}, 14\ns_add_u32 s{so}, s{so}, s{S_XBL}")
    def issue_x(n, so=None, mid=None):
        l, j = divmod(n, 16); slot = n % 4; so = so or S_SO
        e(f"s_add_u32 m0, s{S_LX}, {LDS_X + slot*16384}")
        e("s_nop 0")
        for ee in range(4):
            if l == 0: e.vm_op(f"buffer_load_dwordx4 v{XV0+ee}, s[{SRD_X}:{SRD_X+3}], s{so} offen offset:{ee*1024} {p.x0_flags} lds", ("x",n))
            else:
                sd = SRD_O if (l == 1 and p.x1_in_out) else SRD_WS
                e.vm_op(f"buffer_load_dwordx4 v{XV1}, s[{sd}:{sd+3}], s{so} offen offset:{ee*1024} {p.x_flags} lds", ("x",n))
            if ee == 0 and mid: mid()
    def prep_w(n, sreg=None):
        l, j = divmod(n, 16); sreg = sreg or S_SW
        kc(j)
        if l > 0 and j == 0:
            e(f"s_add_u32 s{S_WBL}, s{S_WB1}, {0 if p.wsame else l*(2<<20)}")
        e(f"s_lshl_b32 s{sreg}, s{S_KC}, 17\ns_add_u32 s{sreg}, s{sreg}, s{S_WB0 if l == 0 else S_WBL}")
    def issue_w(n, sreg=None, mid=None):
        l, j = divmod(n, 16); slot = n % 4; sreg = sreg or S_SW
        e(f"s_add_u32 m0, s{S_LX}, {LDS_W + slot*16384}")
        e("s_nop 0")
        wv = WV0 if l == 0 else WV1
        for ee in range(4):
            e.vm_op(f"buffer_load_dwordx4 v{wv+ee}, s[{SRD_W}:{SRD_W+3}], s{sreg} offen offset:{ee*1024} {p.w_flags} lds", ("w",n))
            if ee == 0 and mid: mid()
    def dma_x(n, checked=False):
        if checked or n < 16: kc(n % 16)
        prep_x(n, checked, have_kc=True); issue_x(n)
    def dma_w(n):
        prep_w(n); issue_w(n)
    def has_x(n):
        l, j = divmod(n, 16)
        return l == 0 or j >= 4
    def dma(n):
        if n > 47: return
        dma_w(n)
        if has_x(n): dma_x(n)
    def plan(n):
        l, j = divmod(n, 16)
        sw, sw2, so = (S_SW, S_SWB, S_SO) if n % 2 == 0 else (S_SW2, S_SWB2, S_SO2)
        if l < 2 and j == 13:
            return (lambda: (prep_w(n+3, sw), prep_w(n+4, sw2)), lambda mid: (issue_w(n+3, sw, mid), issue_w(n+4, sw2)))
        if l < 2 and j in (14, 15):
            return (lambda: prep_w(n+4, sw), lambda mid: issue_w(n+4, sw, mid))
        m = n + 3
        if m > 47: return (lambda: None, lambda mid: mid and mid())
        if has_x(m):
            return (lambda: (prep_w(m, sw), prep_x(m, have_kc=True, so=so)), lambda mid: (issue_w(m, sw, mid), issue_x(m, so)))
        return (lambda: prep_w(m, sw), lambda mid: issue_w(m, sw, mid))
    def prefetch(l):
        e(f"s_lshl_b32 s{S_T0}, s2, 13\ns_lshl_b32 s{S_T0+1}, s{S_A}, 11\ns_add_u32 s{S_T0}, s{S_T0}, s{S_T0+1}")
        if l: e(f"s_add_u32 s{S_T0}, s{S_T0}, {l*(2<<20)}")
        e(f"s_mov_b32 m0, {LDS_DUMMY}")
        e("s_nop 0")
        for k in range(2): e.vm_op(f"buffer_load_dwordx4 v{XV1}, s[{SRD_W}:{SRD_W+3}], s{S_T0} offen offset:{k*1024} lds", ("pf",l))
    def xc_fetch():
        e(f"s_lshl_b32 s{S_T0}, s{S_G}, 7\ns_add_u32 s{S_T0}, s{S_T0}, {WS_XC}")
        e(f"v_and_b32 v{T+3}, 7, v0\nv_lshlrev_b32 v{T+3}, 2, v{T+3}")
        e.vm_op(f"buffer_load_dword v{T+4}, v{T+3}, s[{SRD_WS}:{SRD_WS+3}], s{S_T0} offen sc1", ("xcl",0))
        for k in range(4): e(f"v_mov_b32 v{VD+k}, 0")
    def prewarm(l):
        lab = f"L_nopw{l}"
        if l == 0:
            e.vm_need([("xcl",0)])
            e(f"v_cmp_eq_u32 vcc, s{S_XT}, v{T+4}")
            e("s_nop 1")
            e(f"s_cmp_eq_u64 vcc, -1\ns_cselect_b32 s{S_FAST}, 1, 0")
            if p.force_fast is not None: e(f"s_mov_b32 s{S_FAST}, {int(p.force_fast)}")
        e(f"s_cmp_eq_u32 s{S_FAST}, 0\ns_cbranch_scc1 {lab}")
        for k in range(8):
            e(f"buffer_store_dwordx4 v[{VD}:{VD+3}], v{XV1}, s[{SRD_WS}:{SRD_WS+3}], s{S_STO if k < 4 else S_STO2} offen offset:{(k%4)*1024}")
        e.label(lab)
        e(f"s_add_u32 s{S_STO}, s{S_STO}, {WS_X2-WS_X1}\ns_add_u32 s{S_STO2}, s{S_STO2}, {WS_X2-WS_X1}")
    def sst(i):
        if p.start_stamps: stamp(e,p,16+i,LSR)

    e("s_waitcnt lgkmcnt(0)")
    if p.w0pf:
        e(f"s_lshl_b32 s{S_T0}, s2, 13\ns_lshl_b32 s{S_T0+1}, s{S_A}, 11\ns_add_u32 s{S_T0}, s{S_T0}, s{S_T0+1}")
        e(f"s_add_u32 s{S_PB}, s6, s{S_T0}\ns_addc_u32 s{S_PB+1}, s7, 0")
        for k in range(p.w0pf): e(f"s_load_dword s{80 + k % 16}, s[{S_PB}:{S_PB+1}], {k * 64}")
    srd(e, SRD_X, 4, 8<<20); srd(e, SRD_W, 6, 6<<20)
    if p.stamps: e("v_mov_b32 v60, 0\nv_writelane_b32 v60, s66, 0\nv_writelane_b32 v60, s68, 32")
    sst(0)
    dma_x(0); sst(1); dma_w(0); sst(2)
    srd(e, SRD_WS, 40, WS_SIZE); srd(e, SRD_B, 44, 6144); srd(e, SRD_O, 42, 8<<20)
    e(f"s_min_u32 s{S_T0}, s{S_A}, 2\ns_lshl_b32 s{S_T0+1}, s{S_T0}, 8\ns_add_u32 m0, s{S_T0+1}, {LDS_B}")
    e(f"s_lshl_b32 s{S_T0+1}, s{S_T0}, 11\ns_lshl_b32 s{S_T0+2}, s{S_C}, 8\ns_add_u32 s{S_T0+1}, s{S_T0+1}, s{S_T0+2}")
    e(f"v_lshlrev_b32 v{T}, 2, v0")
    e.vm_op(f"buffer_load_dword v{T}, s[{SRD_B}:{SRD_B+3}], s{S_T0+1} offen lds", ("b",0))
    sst(3)
    if p.init == "B": dma_x(1); sst(4); dma_w(1); sst(5)
    if p.init == "C": dma_x(1)
    if p.init == "D": dma_w(1)
    e(f"v_lshlrev_b32 v{XV1}, 4, v0")
    e(f"v_xor_b32 v{T+3}, 128, v{WV0}")
    e(f"v_mov_b32 v{WV1}, v{WV0}\nv_add_u32 v{WV1+1}, {4*2048-1024}, v{T+3}\nv_add_u32 v{WV1+2}, {8*2048-2048}, v{WV0}\nv_add_u32 v{WV1+3}, {12*2048-3072}, v{T+3}")
    e(f"s_lshl_b32 s{S_XB1}, s{S_G}, 18\ns_add_u32 s{S_XB1}, s{S_XB1}, s{S_LX}")
    e(f"s_lshl_b32 s{S_WB1}, s{S_A}, 15\ns_lshl_b32 s{S_T0+1}, s{S_C}, 8\ns_add_u32 s{S_WB1}, s{S_WB1}, s{S_T0+1}")
    e(f"s_lshr_b32 s{S_T0}, s{S_G}, 3\ns_mul_i32 s{S_OFF}, s{S_T0}, 7\ns_lshr_b32 s{S_OFF}, s{S_OFF}, 1")
    e(f"s_lshl_b32 s{S_T0}, s{S_G}, 8\ns_add_u32 s{S_T0}, s{S_T0}, {WS_FLAG}")
    e(f"v_and_b32 v{T+1}, 31, v0\nv_lshlrev_b32 v{T+1}, 2, v{T+1}\nv_add_u32 v{T+1}, s{S_T0}, v{T+1}")
    if p.codepf:
        e(f"s_getpc_b64 s[{S_PB}:{S_PB+1}]")
        e.label("L_pc")
        e(f"s_lshr_b32 s{S_T0}, s2, 3\ns_lshl_b32 s{S_T0}, s{S_T0}, 2\ns_add_u32 s{S_T0}, s{S_T0}, s{S_A}\ns_mul_i32 s{S_T0}, s{S_T0}, 256")
        e(f"s_add_u32 s{S_PB}, s{S_PB}, s{S_T0}\ns_addc_u32 s{S_PB+1}, s{S_PB+1}, 0")
        for k in range(4): e(f"s_load_dword s{80+k}, s[{S_PB}:{S_PB+1}], {k*64}")
    build_tab()
    stamp(e,p,1,LSR)
    e.vm_need([("x",0),("w",0),("b",0)])
    stamp(e,p,2,LSR)
    e("s_barrier")
    if p.init == "A": dma_x(1); dma_w(1)
    if p.init == "C": dma_w(1)
    if p.init == "D": dma_x(1)
    dma(2)
    prepped = set()
    for l in range(3):
        for j in range(16):
            n = 16*l + j
            if l > 0 and j == 0: continue
            if n == 47: continue
            prep, issue = plan(n)
            polled = l > 0 and 1 <= j <= p.apoll
            if n not in prepped and not polled: prep()
            e.vm_need([("x",n+1),("w",n+1)])
            if polled:
                poll_collect(("ap", n-1)); prep()
            if n in (17,33): stamp(e,p,5+3*(n//16-1),LSR)
            if p.stage_stamps is not False and n//16 == p.stage_stamps: stamp(e,p,16+n%16,LSR)
            e("s_barrier")
            if l > 0 and 1 <= j < p.apoll: poll_async(l, ("ap", n))
            def mid(n=n, l=l, j=j):
                if n == 0:
                    e(f"s_lshl_b32 s{S_T0}, s{S_G}, 7\ns_add_u32 s{S_T0}, s{S_T0}, {WS_V}")
                    e(f"s_load_dword s{S_TAG}, s[40:41], s{S_T0}")
                if n == 12:
                    e("s_waitcnt lgkmcnt(0)")
                    e(f"s_add_u32 s{S_TAG}, s{S_TAG}, {TAGK}")
                if p.lspf and l < 2:
                    ntouch = 2048 // p.lspf
                    ls, per = p.lspf_start, p.lspf_per
                    k0 = (j - ls) * per
                    if j == ls:
                        e(f"s_lshl_b32 s{S_T0}, s2, 13\ns_lshl_b32 s{S_T0+1}, s{S_A}, 11\ns_add_u32 s{S_T0}, s{S_T0}, s{S_T0+1}\ns_add_u32 s{S_T0}, s{S_T0}, {(l+1)*(2<<20)}")
                        e(f"s_add_u32 s{S_PB}, s6, s{S_T0}\ns_addc_u32 s{S_PB+1}, s7, 0")
                    for k in (range(max(k0,0), min(k0 + per, ntouch)) if j >= ls else []):
                        e(f"s_load_dword s{80 + k % 16}, s[{S_PB}:{S_PB+1}], {k * p.lspf}")
                nx = n + 1
                l2, j2 = divmod(nx, 16)
                if p.preprep and j < 15 and nx != 47 and not (l2 > 0 and j2 == 0) and not (l2 > 0 and 1 <= j2 <= p.apoll):
                    plan(nx)[0](); prepped.add(nx)
            issue(mid)
        if l < 2:
            n1 = 16*(l+1)
            e.vm_need([("w",n1),("w",n1+1)])
            e("s_barrier")
            stamp(e,p,3+3*l,LSR)
            e(f"s_lshl_b32 s{S_RDY}, s{S_C}, 2\ns_lshl_b32 s{S_RDY}, 15, s{S_RDY}")
            e(f"s_add_u32 s{S_XBL}, s{S_XB1}, {WS_X2 if l == 1 else WS_X1}")
            ensure(n1+2, also=n1+3)
            dma_x(n1+2, True); stamp(e,p,4+3*l,LSR)
            if p.apoll and p.p_early: poll_async(l+1, ("ap", n1))
            dma_x(n1+3, True)
            if p.apoll and not p.p_early: poll_async(l+1, ("ap", n1))
        else:
            e(f"s_cmp_eq_u32 s{S_C}, 0\ns_cbranch_scc0 L_nov\ns_cmp_eq_u32 s{S_A}, 0\ns_cbranch_scc0 L_nov")
            e(f"v_mov_b32 v{T+3}, s{S_TAG}\ns_lshl_b32 s{S_T0}, s{S_G}, 7\ns_add_u32 s{S_T0}, s{S_T0}, {WS_V}\nv_mov_b32 v{T+4}, s{S_T0}")
            e(f"buffer_store_dword v{T+3}, v{T+4}, s[{SRD_WS}:{SRD_WS+3}], 0 offen sc1")
            e.label("L_nov")
            e("s_barrier")

def gen_outstore(e, p):
    e.label("L_outstore")
    e(f"v_mbcnt_lo_u32_b32 v1, -1, 0\nv_mbcnt_hi_u32_b32 v1, -1, v1")
    e(f"v_lshrrev_b32 v2, 4, v1\nv_and_b32 v3, 15, v1")
    e(f"s_lshl_b32 s{S_T0}, s{S_WAVE}, 4\nv_add_u32 v4, s{S_T0}, v2")
    e(f"v_lshlrev_b32 v5, 11, v4\nv_lshlrev_b32 v6, 4, v3\nv_add_u32 v5, v5, v6")
    e(f"s_lshl_b32 s{S_T0+1}, s{S_G}, 18\ns_lshl_b32 s{S_T0+2}, s{S_C}, 8\ns_add_u32 s{S_T0+1}, s{S_T0+1}, s{S_T0+2}")
    for i in range(4):
        e(f"v_add_u32 v6, {4*i}, v2\nv_xor_b32 v6, v6, v3\nv_lshlrev_b32 v6, 4, v6\nv_lshlrev_b32 v7, 8, v4\nv_add_u32 v6, v6, v7")
        e(f"ds_read_b128 v[{8+4*i}:{11+4*i}], v6 offset:{i*1024}")
    for i in range(1,4):
        e(f"v_add_u32 v{24+i}, {4*2048*i}, v5")
    e("v_mov_b32 v24, v5")
    for i in range(4):
        e(f"s_waitcnt lgkmcnt({3-i})")
        e(f"buffer_store_dwordx4 v[{8+4*i}:{11+4*i}], v{24+i}, s[{SRD_O}:{SRD_O+3}], s{S_T0+1} offen {p.out_flags}")
    if p.enc:
        what, M, wg = p.enc
        e(f"s_cmp_eq_u32 s2, {wg}\ns_cbranch_scc0 L_encd\ns_cmp_eq_u32 s{S_WAVE}, 0\ns_cbranch_scc0 L_encd")
        e("s_waitcnt vmcnt(0)\ns_memrealtime s[64:65]\ns_memtime s[62:63]\ns_waitcnt lgkmcnt(0)")
        if what == "dur": e(f"s_sub_u32 s66, s64, s96\ns_mul_i32 s66, s66, {M}")
        else: e(f"s_sub_u32 s66, s62, s98\ns_lshr_b32 s66, s66, 5\ns_mul_i32 s66, s66, {M}")
        e.label("L_encs")
        e("s_memrealtime s[62:63]\ns_waitcnt lgkmcnt(0)\ns_sub_u32 s62, s62, s64\ns_cmp_lt_u32 s62, s66\ns_cbranch_scc1 L_encs")
        e.label("L_encd")
    if p.dbgtime:
        e("s_waitcnt vmcnt(0)\ns_memrealtime s[64:65]\ns_waitcnt lgkmcnt(0)")
        e("s_mov_b32 s84, s78\ns_mov_b32 s85, s79\ns_mov_b32 s86, 256\ns_mov_b32 s87, 0x00020000")
        e("s_not_b32 s62, s68\nv_mov_b32 v40, s64\nv_mov_b32 v41, s62\nv_mov_b32 v42, 0")
        e("v_cmp_eq_u32 vcc, 0, v1\ns_and_saveexec_b64 s[62:63], vcc")
        e("buffer_atomic_umax v40, v42, s[84:87], 0 offen\nbuffer_atomic_umax v41, v42, s[84:87], 0 offen offset:4")
        e("s_waitcnt vmcnt(0)")
    if p.stamps:
        e("s_waitcnt vmcnt(0)")
        stamp(e,p,15,LSR)
        stamp_out(e,p,60)

def gen(p=None):
    p = p or P()
    CUR["order"] = p.order
    e = Em()
    hdr = f"""; DCN-v2 cross network, 3 layers fused in one launch.  Generated by my own generator script.
; @launch grid=(256,1,1) block=(512,1,1) lds={LDS_SIZE}
.amdgcn_target "amdgcn-amd-amdhsa--gfx950"
.text
.globl {KNAME}
.p2align 8
.type {KNAME},@function
{KNAME}:"""
    e(f"s_cmp_ge_u32 s2, 256\ns_cbranch_scc1 L_end")
    if p.stamps: e("s_memtime s[66:67]\ns_memrealtime s[68:69]\ns_waitcnt lgkmcnt(0)")
    if p.dbgtime: e("s_memrealtime s[68:69]\ns_load_dwordx2 s[78:79], s[0:1], 32")
    if p.enc: e("s_memrealtime s[96:97]\ns_memtime s[98:99]")
    e("s_load_dwordx4 s[4:7], s[0:1], 0")
    e("s_load_dwordx2 s[44:45], s[0:1], 16")
    e("s_load_dwordx2 s[42:43], s[0:1], 24")
    e("s_load_dwordx2 s[40:41], s[0:1], 40")
    e(f"v_lshrrev_b32 v1, 6, v0\ns_lshr_b32 s{S_C}, s2, 3\ns_and_b32 s{S_C}, s{S_C}, 7")
    e(f"s_lshr_b32 s{S_G}, s2, 6\ns_lshl_b32 s{S_G}, s{S_G}, 3\ns_and_b32 s{S_T0}, s2, 7\ns_add_u32 s{S_G}, s{S_G}, s{S_T0}")
    e(f"v_readfirstlane_b32 s{S_WAVE}, v1")
    e("s_nop 3")
    if p.loader_first:
        e(f"s_cmp_lt_u32 s{S_WAVE}, 4\ns_cbranch_scc1 L_compute")
        gen_loader(e, p)
        e("s_branch L_outstore")
        e.lds = []; e.vm = []
        gen_compute(e, p)
    else:
        e(f"s_cmp_ge_u32 s{S_WAVE}, 4\ns_cbranch_scc1 L_loader")
        gen_compute(e, p)
        gen_loader(e, p)
    gen_outstore(e, p)
    e.label("L_end")
    e("s_endpgm")
    tail = f""".section .rodata,"a"
.p2align 6
.amdhsa_kernel {KNAME}
  .amdhsa_next_free_vgpr 256
  .amdhsa_next_free_sgpr 102
  .amdhsa_accum_offset 256
  .amdhsa_group_segment_fixed_size 0
  .amdhsa_kernarg_size 48
  .amdhsa_user_sgpr_count 2
  .amdhsa_user_sgpr_kernarg_segment_ptr 1
  .amdhsa_system_sgpr_workgroup_id_x 1
.end_amdhsa_kernel
"""
    return hdr + "\n" + e.text() + "\n" + tail

if __name__ == "__main__":
    p = P()
    for a in sys.argv[1:]:
        k, v = a.split("=")
        setattr(p, k, eval(v))
    sys.stdout.write(gen(p))
```

```python
import sys

KNAME = "standalone__cross_network_dcn__recsys_kernel"

class P:
    stamps = False; stage_stamps = False
    bar_gap = 3; dbl = 0; dbl0 = 0
    prio = 2
    poll_max = 20000
    a_only = 12
    nosync = False
    order = "c"
    mrot = True
    out_flags = "nt"
    st_flags = "sc1"
    x_flags = "sc1"
    wsame = False
    stampreg = 15
    pub_gap = 3
    apoll = 2
    lspf = 0; lspf_per = 3; lspf_start = 1
    nostore = False
    prog_layers = (2,)
    force_fast = None
    x_slow = ()
    x1_in_out = True
    b15_gap = 4
    dw = 3
    x1_last = 16
    x2_last = 10
    tlbw = None
    cpf = ((1,4,1),(1,5,1),(2,17,1),(2,17,2))
    enc = None
    x0f01 = ''; x0f = ''; w0f = ''
    w0lead = ''
    w0pf = 0
    w0pf_pos = 1
    dsw_lag = 0
    exp_b128 = False
    span0 = None
    exp_nowait = 0
    exp_loop = False
    exp_pace = 0
    barw = ()
    tid = False
    exp_vgpr = False
    coarse = 0
    exp_nox = 0
    cdma = 0
    ldelay = 0
    cd_gap = 2
    m0pre = False
    moff = (0,4,8,12)
    prog_pk = False
    pub_pre = False
    init = "B"

LDS_X = 0
LDS_W = 65536
LDS_B = 131072
LDS_DUMMY = 131072 + 1024
LDS_SIZE = 131072 + 1024 + 1024
WS_X1 = 0
WS_X2 = 8 << 20
WS_FLAG = 16 << 20
WS_FLAGB = (16 << 20) + 0x8000
WS_V = (16 << 20) + 0x10000
WS_XC = (16 << 20) + 0x18000
WS_STAMP = (17 << 20)
WS_SIZE = (18 << 20)
TAGK = 0x6A09E667
TAGX = 0x3C6EF372

class Em:
    def __init__(s):
        s.L = []; s.lds = []; s.vm = []; s.n = 0; s.mw = {}
    def __call__(s, t):
        for x in t.split("\n"):
            x = x.strip()
            if not x: continue
            if x.endswith(":"): s.L.append(x); continue
            s.L.append("    " + x)
            s.n += (int(x.split()[1]) + 1) if x.startswith("s_nop") else 1
    def label(s, n): s.L.append(n + ":")
    def lds_op(s, text, dst=()):
        s(text); s.lds.append(set(dst))
    def need(s, regs):
        regs = set(regs); last = -1
        for i, d in enumerate(s.lds):
            if d & regs: last = i
        if last >= 0:
            n = min(len(s.lds) - 1 - last, 15)
            s(f"s_waitcnt lgkmcnt({n})")
            s.lds = s.lds[len(s.lds)-n:] if n else []
    def lds_all(s):
        if s.lds: s("s_waitcnt lgkmcnt(0)")
        s.lds = []
    pace = 0
    def vm_op(s, text, tag):
        s(text); s.vm.append(tag)
        if s.pace and " lds" in text and "dwordx4" in text:
            k = s.pace
            while k > 0:
                s(f"s_nop {min(k,16)-1}"); k -= 16
    def vm_need(s, tags):
        last = -1
        for i, t in enumerate(s.vm):
            if t in tags: last = i
        if last >= 0:
            n = len(s.vm) - 1 - last
            assert n <= 63, n
            s(f"s_waitcnt vmcnt({n})")
            s.vm = s.vm[last+1:]
    def mfma(s, a, w, x, c):
        s(f"v_mfma_f32_16x16x32_bf16 {vr(a,4)}, {vr(w,4)}, {vr(x,4)}, {vr(c,4)}")
        for r in range(a, a+4): s.mw[r] = s.n
    def after_mfma(s, regs):
        last = max([s.mw.get(r, -99) for r in regs])
        gap = s.n - last
        if gap < 9: s(f"s_nop {9 - gap - 1}")
    def text(s): return "\n".join(s.L)

def R(a, n): return list(range(a, a+n))
def vr(a, n): return f"v[{a}:{a+n-1}]" if n > 1 else f"v{a}"

V_LANE = 0
V_XA0, V_XA1 = 1, 2
V_WA = 3
V_LW = 7
V_L16 = 8
V_FO = 9; V_FD = 10
V_T = 11
ACC = 16; FR = 80; X0F = 144; RES = 208; BIAS = 240
def acc(rt, ct): return ACC + (rt*4+ct)*4
def xfr(st, rt): return FR + st*32 + rt*4
def wfr(st, ct): return FR + st*32 + 16 + ct*4
def x0f(rt, ct): return X0F + (rt*4+ct)*4
def res(rt, ct): return RES + (rt*4+ct)*2

SNAKE_R = [(rt, ct) for rt in range(4) for ct in (range(4) if rt % 2 == 0 else range(3, -1, -1))]
SNAKE_C = [(rt, ct) for ct in range(4) for rt in (range(4) if ct % 2 == 0 else range(3, -1, -1))]
ORDER = {"r": SNAKE_R, "c": SNAKE_C}
CUR = {"order": "c"}

S_WAVE=3
SRD_X=8; SRD_W=12; SRD_WS=16; SRD_O=20; SRD_B=24
S_G=28; S_C=29; S_A=30; S_B2=31
S_TAG=32; S_MASK=33
S_T0=34
S_SWB=46; S_XB0=48; S_XB1=49; S_SWB2=50; S_WB0=51; S_WB1=52; S_LX=53; S_KC=54; S_SO=55; S_SW=56; S_CNT=57; S_XBL=58
S_FB=59; S_STO=60; S_STO2=61
S_RDY=70; S_NEED=71; S_OFF=72; S_PO=73; S_FAST=74; S_XT=75; S_NEED2=76; S_SW2=78; S_WBL=79
S_PB=96; S_TAB=98; S_SO2=100
SRD_T1=84; SRD_T2=88; S_PFC=77

LSR = 60
def stamp(e, p, idx, reg=None):
    if not p.stamps: return
    reg = reg or p.stampreg
    e(f"s_memtime s[62:63]\ns_memrealtime s[64:65]\ns_waitcnt lgkmcnt(0)\nv_writelane_b32 v{reg}, s62, {idx}\nv_writelane_b32 v{reg}, s64, {idx+32}")
    e.lds = []
def stamp_out(e, p, reg):
    if not p.stamps: return
    e(f"s_lshl_b32 s62, s2, 3\ns_add_u32 s62, s62, s{S_WAVE}\ns_lshl_b32 s62, s62, 8\ns_add_u32 s62, s62, {WS_STAMP}")
    e(f"v_mbcnt_lo_u32_b32 v40, -1, 0\nv_mbcnt_hi_u32_b32 v40, -1, v40\nv_lshlrev_b32 v40, 2, v40")
    e(f"buffer_store_dword v{reg}, v40, s[{SRD_WS}:{SRD_WS+3}], s62 offen")

def enc_point(e, p, name):
    if p.enc and p.enc[0] == name:
        e("s_memrealtime s[66:67]\ns_waitcnt lgkmcnt(0)"); e.lds = []
def srd(e, b, lo, size):
    e(f"s_mov_b32 s{b}, s{lo}\ns_mov_b32 s{b+1}, s{lo+1}\ns_mov_b32 s{b+2}, {size}\ns_mov_b32 s{b+3}, 0x00020000")

def xread_to(e, r, rt, u, slot):
    e.lds_op(f"ds_read_b128 {vr(r,4)}, v{V_XA0+u} offset:{slot*16384 + rt*2048}", R(r,4))
def wread_to(e, r, ct, u, h, slot):
    if CUR.get('b128'):
        if h == 0: e.lds_op(f"ds_read_b128 {vr(r,4)}, v{V_L16} offset:{(slot*16384 + u*8192 + ct*1024) % 65536}", R(r,4))
        return
    e.lds_op(f"ds_read_b64_tr_b16 {vr(r+2*h,2)}, v{V_WA+ct} offset:{slot*16384 + u*8192 + h*4096}", R(r+2*h,2))

def frag_reads(st, u, slot, only=None):
    def W(ct,h): return lambda e: wread_to(e, wfr(st,ct), ct, u, h, slot)
    def X(rt): return lambda e: xread_to(e, xfr(st,rt), rt, u, slot)
    if CUR["order"] == "r":
        seq = [("w",W(0,0)),("w",W(0,1)),("x",X(0)),("w",W(1,0)),("w",W(1,1)),("w",W(2,0)),("w",W(2,1)),
               ("w",W(3,0)),("w",W(3,1)),("x",X(1)),("x",X(2)),("x",X(3))]
    else:
        seq = [("w",W(0,0)),("w",W(0,1)),("x",X(0)),("x",X(1)),("x",X(2)),("x",X(3)),("w",W(1,0)),("w",W(1,1)),
               ("w",W(2,0)),("w",W(2,1)),("w",W(3,0)),("w",W(3,1))]
    return [f for k,f in seq if only is None or k == only]

def step(e, p, st, fills, first=False):
    for m,(rt,ct) in enumerate(ORDER[CUR['order']]):
        a = acc(rt,ct); w = wfr(st,ct); x = xfr(st,rt)
        if p.coarse and CUR['order'] == 'c' and m == 0:
            e.need(R(w,4)+R(xfr(st,0),16 if p.coarse == 1 else 8))
        if p.coarse == 2 and CUR['order'] == 'c' and m == 2:
            e.need(R(xfr(st,2),8))
        if not CUR.get('nowait'): e.need(R(w,4)+R(x,4))
        e.mfma(a, w, x, BIAS+ct*4 if first else a)
        for f in fills.get(m, []): f(e)

def spread(items, start, end, dbl=0):
    d = {}; g = start; i = 0
    while i < len(items):
        n = 2 if (g - start) < dbl else 1
        for k in range(n):
            if i < len(items): d.setdefault(min(g, end), []).append(items[i]); i += 1
        g += 1
    return d
def spread_even(items, start, end):
    d = {}; n = len(items); span = end - start + 1
    for i, it in enumerate(items):
        d.setdefault(start + (i * span) // n, []).append(it)
    return d
def merge(*ds):
    o = {}
    for d in ds:
        for k,v in d.items(): o.setdefault(k, []).extend(v)
    return o

def cdma_stage(p, m):
    if not p.cdma or p.dw != 3: return False
    n = m - 3; l, j = divmod(n, 16)
    return n >= 0 and 2 <= j <= 12

def gen_compute(e, p):
    e.label("L_compute")
    e(f"s_and_b32 s{S_B2}, s{S_WAVE}, 1\ns_lshr_b32 s{S_A}, s{S_WAVE}, 1")
    e(f"s_setprio {p.prio}")
    T=V_T
    e(f"v_and_b32 v{V_LANE}, 63, v0")
    e(f"v_and_b32 v{T}, 15, v{V_LANE}")
    e(f"v_lshrrev_b32 v{T+1}, 4, v{V_LANE}")
    e(f"v_lshrrev_b32 v{T+2}, 1, v{T}")
    e(f"v_xor_b32 v{T+3}, v{T+2}, v{T+1}\nv_lshlrev_b32 v{T+3}, 4, v{T+3}")
    e(f"v_lshlrev_b32 v{T+4}, 7, v{T}\nv_add_u32 v{T+3}, v{T+3}, v{T+4}")
    e(f"s_lshl_b32 s{S_T0}, s{S_A}, 13")
    e(f"v_add_u32 v{V_XA0}, s{S_T0}, v{T+3}\nv_xor_b32 v{V_XA1}, 64, v{V_XA0}")
    e(f"v_lshrrev_b32 v{T+3}, 1, v{T+1}\nv_xor_b32 v{T+3}, v{T+3}, v{T+2}\nv_lshlrev_b32 v{T+3}, 4, v{T+3}")
    e(f"v_add_u32 v{T+3}, v{T+3}, v{T+4}\nv_and_b32 v{T+4}, 1, v{T+1}\nv_lshlrev_b32 v{T+4}, 3, v{T+4}\nv_add_u32 v{T+3}, v{T+3}, v{T+4}")
    e(f"s_lshl_b32 s{S_T0+1}, s{S_B2}, 14\ns_add_u32 s{S_T0+1}, s{S_T0+1}, s{S_T0}")
    e(f"v_add_u32 v{V_LW}, s{S_T0+1}, v{T+3}")
    e(f"v_lshrrev_b32 v{T+2}, 2, v{T}\nv_lshlrev_b32 v{T+3}, 2, v{T+1}\nv_add_u32 v{T+2}, v{T+2}, v{T+3}")
    e(f"v_and_b32 v{T+3}, 7, v{T+2}")
    e(f"v_lshlrev_b32 v{T+2}, 8, v{T+2}\nv_and_b32 v{T+4}, 3, v{T}\nv_lshlrev_b32 v{T+4}, 3, v{T+4}\nv_add_u32 v{T+2}, v{T+2}, v{T+4}")
    e(f"v_add_u32 v{T+2}, {LDS_W}, v{T+2}")
    e(f"s_lshl_b32 s{S_T0+2}, s{S_B2}, 2")
    for ct in range(4):
        e(f"s_add_u32 s{S_T0+3}, s{S_T0+2}, {ct}\nv_xor_b32 v{T+4}, s{S_T0+3}, v{T+3}\nv_lshlrev_b32 v{T+4}, 5, v{T+4}\nv_add_u32 v{V_WA+ct}, v{T+2}, v{T+4}")
    e(f"v_lshlrev_b32 v{V_L16}, 4, v{V_LANE}")
    e(f"s_mov_b32 s{S_MASK}, 0xffff0000")
    e(f"s_lshl_b32 s{S_T0+3}, s{S_G}, 8\ns_lshl_b32 s{S_T0+4}, s{S_C}, 4\ns_add_u32 s{S_T0+3}, s{S_T0+3}, s{S_T0+4}")
    e(f"s_lshl_b32 s{S_T0+4}, s{S_WAVE}, 2\ns_add_u32 s{S_T0+3}, s{S_T0+3}, s{S_T0+4}\ns_add_u32 s{S_T0+3}, s{S_T0+3}, {WS_FLAG}")
    e(f"v_mov_b32 v{V_FO}, 0x7ffffff0\nv_mov_b32 v{T+4}, s{S_T0+3}\nv_cmp_eq_u32 vcc, 0, v{V_LANE}\ns_nop 1\nv_cndmask_b32 v{V_FO}, v{V_FO}, v{T+4}, vcc")
    e(f"s_mov_b32 s{S_FB}, {WS_FLAGB-WS_FLAG}")
    e(f"s_lshl_b32 s{S_STO}, s{S_G}, 18\ns_lshl_b32 s{S_T0+3}, s{S_C}, 15\ns_add_u32 s{S_STO}, s{S_STO}, s{S_T0+3}\ns_add_u32 s{S_STO}, s{S_STO}, s{S_T0+1}")
    e(f"s_add_u32 s{S_STO2}, s{S_STO}, 4096")
    e("s_waitcnt lgkmcnt(0)"); srd(e, SRD_WS, 40, WS_SIZE); srd(e, SRD_O, 42, 8<<20)
    if p.cpf:
        srd(e, SRD_W, 6, 6<<20)
        e(f"s_lshl_b32 s{S_PFC}, s2, 13\ns_lshl_b32 s{S_T0}, s{S_WAVE}, 11\ns_add_u32 s{S_PFC}, s{S_PFC}, s{S_T0}")
    if p.cdma:
        srd(e, SRD_W, 6, 6<<20)
        e(f"s_lshl_b32 s{S_LX}, s{S_WAVE}, 12\ns_add_u32 s{S_LX}, s{S_LX}, {LDS_W + 3072}")
        e(f"s_lshr_b32 s{S_T0}, s{S_WAVE}, 1\ns_lshl_b32 s{S_T0}, s{S_T0}, 5\ns_and_b32 s{S_T0+3}, s{S_WAVE}, 1\ns_lshl_b32 s{S_T0+3}, s{S_T0+3}, 2\ns_add_u32 s{S_T0}, s{S_T0}, s{S_T0+3}")
        e(f"s_lshl_b32 s{S_WB0}, s{S_T0}, 11\ns_lshl_b32 s{S_T0+3}, s{S_C}, 8\ns_add_u32 s{S_WB0}, s{S_WB0}, s{S_T0+3}")
        e(f"s_lshl_b32 s{S_WB1}, s{S_WAVE}, 15\ns_add_u32 s{S_WB1}, s{S_WB1}, s{S_T0+3}")
        e(f"s_lshr_b32 s{S_T0}, s{S_G}, 3\ns_lshl_b32 s{S_T0}, s{S_T0}, 2\ns_lshr_b32 s{S_OFF}, {sum(o << (4*i) for i,o in enumerate(p.moff))}, s{S_T0}\ns_and_b32 s{S_OFF}, s{S_OFF}, 15")
        e(f"s_mov_b32 s{S_TAB}, 0\ns_mov_b32 s{S_TAB+1}, 0")
        for j in range(16):
            if j < 2 or not p.mrot:
                e(f"s_lshl_b32 s{S_KC}, s{S_C}, 1\ns_add_u32 s{S_KC}, s{S_KC}, {j}\ns_and_b32 s{S_KC}, s{S_KC}, 15")
            else:
                e(f"s_add_u32 s{S_KC}, s{S_OFF}, {j-2}\ns_cmp_ge_u32 s{S_KC}, 14\ns_cselect_b32 s{S_T0+5}, 14, 0\ns_sub_u32 s{S_KC}, s{S_KC}, s{S_T0+5}")
                e(f"s_lshl_b32 s{S_T0+5}, s{S_C}, 1\ns_add_u32 s{S_KC}, s{S_KC}, s{S_T0+5}\ns_add_u32 s{S_KC}, s{S_KC}, 2\ns_and_b32 s{S_KC}, s{S_KC}, 15")
            e(f"s_lshl_b32 s{S_KC}, s{S_KC}, {4*(j%8)}\ns_or_b32 s{S_TAB+j//8}, s{S_TAB+j//8}, s{S_KC}")
    e(f"s_lshl_b32 s{S_T0}, s{S_G}, 7\ns_add_u32 s{S_T0}, s{S_T0}, {WS_V}")
    e(f"s_load_dword s{S_TAG}, s[40:41], s{S_T0}")
    e(f"s_getreg_b32 s{S_XT}, hwreg(HW_REG_XCC_ID, 0, 4)")
    e("s_waitcnt lgkmcnt(0)")
    e(f"s_add_u32 s{S_XT}, s{S_XT}, s{S_TAG}\ns_add_u32 s{S_XT}, s{S_XT}, {TAGX}")
    e(f"s_add_u32 s{S_TAG}, s{S_TAG}, {TAGK}\nv_mov_b32 v{V_FD}, s{S_TAG}")
    use_xc = p.force_fast is None
    def op_xc(e):
        e(f"s_lshl_b32 s{S_T0}, s{S_G}, 7\ns_lshl_b32 s{S_T0+1}, s{S_C}, 2\ns_add_u32 s{S_T0}, s{S_T0}, s{S_T0+1}\ns_add_u32 s{S_T0}, s{S_T0}, {WS_XC}")
        e(f"v_mov_b32 v{T+2}, 0x7ffffff0\nv_mov_b32 v{T+3}, s{S_T0}\nv_cmp_eq_u32 vcc, 0, v{V_LANE}\ns_nop 1\nv_cndmask_b32 v{T+2}, v{T+2}, v{T+3}, vcc\nv_mov_b32 v{T+3}, s{S_XT}")
        e(f"buffer_store_dword v{T+3}, v{T+2}, s[{SRD_WS}:{SRD_WS+3}], 0 offen sc1")
    if not use_xc: e(f"s_mov_b32 s{S_FAST}, {int(p.force_fast)}")
    def op_touch(e):
        e(f"s_lshl_b32 s{S_T0}, s{S_G}, 8\ns_add_u32 s{S_T0}, s{S_T0}, {WS_FLAG}\nv_lshlrev_b32 v{T+2}, 2, v{V_LANE}")
        e(f"s_mov_b32 m0, {LDS_DUMMY}\ns_nop 0")
        e(f"buffer_load_dword v{T+2}, s[{SRD_WS}:{SRD_WS+3}], s{S_T0} offen sc1 lds")

    def bias_reads(l):
        def f0(e):
            e(f"v_lshrrev_b32 v{T}, 4, v{V_LANE}\nv_lshlrev_b32 v{T}, 3, v{T}\ns_lshl_b32 s{S_T0}, s{S_B2}, 7\ns_add_u32 s{S_T0}, s{S_T0}, {LDS_B}\nv_add_u32 v{T}, s{S_T0}, v{T}")
        out=[f0]
        for ct in range(4):
            r = BIAS+ct*4+2
            out.append(lambda e, ct=ct, r=r: e.lds_op(f"ds_read_b64 {vr(r,2)}, v{T} offset:{l*256 + ct*32}", R(r,2)))
        return out
    def bias_unpack():
        out=[]
        for ct in range(4):
            b = BIAS+ct*4
            def f(e, b=b):
                e.need(R(b+2,2))
                e(f"v_lshlrev_b32 v{b}, 16, v{b+2}\nv_and_b32 v{b+1}, s{S_MASK}, v{b+2}")
                e(f"v_lshlrev_b32 v{b+2}, 16, v{b+3}\nv_and_b32 v{b+3}, s{S_MASK}, v{b+3}")
            out.append(f)
        return out

    if p.stamps: e("v_mov_b32 v15, 0\nv_writelane_b32 v15, s66, 0\nv_writelane_b32 v15, s68, 32")
    stamp(e,p,1)
    e("s_barrier")
    enc_point(e, p, "bfirst")
    stamp(e,p,2)
    for f in bias_reads(0): f(e)
    for f in frag_reads(0,0,0): f(e)
    for f in bias_unpack(): f(e)
    for k in range(16): e(f"v_add_f32 v{BIAS+k}, 1.0, v{BIAS+k}")
    e("s_nop 1")
    unpack_q = []
    order = ORDER[CUR['order']]
    def place_adds(q, gaps):
        d = {}
        for g in gaps:
            for i,(m,f) in enumerate(q):
                if 8 <= (g - m) % 16 <= 13:
                    d.setdefault(g, []).append(f); q.pop(i); break
        return d

    XBUF = [RES, RES+12]; TMP = RES+24
    def WP(ct, s): return (FR+32 if ct < 2 else FR) + ((ct % 2)*3 + (s-1))*4
    def XP(buf, s): return XBUF[buf] + (s-1)*4
    SU = {1:(2,1), 2:(3,0), 3:(3,1)}
    def wr_(ct, s, h): return lambda e: wread_to(e, WP(ct,s), ct, SU[s][1], h, SU[s][0])
    def xr_(buf, rt, s): return lambda e: xread_to(e, XP(buf,s), rt, SU[s][1], SU[s][0])

    def block_epilogue(l, bi, rt, t):
        P4 = BIAS + 4*(bi % 4)
        items = []
        for c2 in range(2):
            ct = 2*t + c2
            if p.prog_pk:
                for h in range(2):
                    def mul(e, ct=ct, h=h, c2=c2):
                        e.after_mfma([acc(rt,ct)+2*h, acc(rt,ct)+2*h+1])
                        e(f"v_pk_mul_f32 {vr(TMP+4*c2+2*h,2)}, {vr(x0f(rt,ct)+2*h,2)}, {vr(acc(rt,ct)+2*h,2)}")
                    items.append(mul)
            else:
                for r in range(4):
                    def mul(e, ct=ct, r=r, c2=c2):
                        e.after_mfma([acc(rt,ct)+r])
                        e(f"v_mul_f32 v{TMP+4*c2+r}, v{x0f(rt,ct)+r}, v{acc(rt,ct)+r}")
                    items.append(mul)
        cv = [lambda e, d=d: e(f"v_cvt_pk_bf16_f32 v{P4+d}, v{TMP+2*d}, v{TMP+2*d+1}") for d in range(4)]
        hn = len(items)//2
        seq = items[0:hn] + [cv[0], cv[1]] + items[hn:] + [cv[2], cv[3]]
        if l < 2:
            so = S_STO if rt < 2 else S_STO2
            if not p.nostore:
                sd = SRD_O if (l == 0 and p.x1_in_out) else SRD_WS
                seq.append(lambda e: e(f"buffer_store_dwordx4 {vr(P4,4)}, v{V_L16}, s[{sd}:{sd+3}], s{so} offen offset:{(rt%2)*2048+t*1024} {p.st_flags}"))
            seq.append(lambda e: e.lds_op(f"ds_write_b128 v{V_LW}, {vr(P4,4)} offset:{rt*2048+t*1024}"))
            return seq, []
        bo = (bi % 2)*1024; RB = T + 0 if False else None
        RD = FR + 56 + 4*(bi % 2)
        seq.append(lambda e: e.lds_op(f"ds_write_b64 v{V_LW}, {vr(P4,2)} offset:{bo}"))
        seq.append(lambda e: e.lds_op(f"ds_write_b64 v{V_T}, {vr(P4+2,2)} offset:{bo}"))
        seq.append(lambda e: e.lds_op(f"ds_read_b128 {vr(RD,4)}, v{V_FO} offset:{bo}", R(RD,4)))
        def st(e):
            e.need(R(RD,4))
            e(f"s_add_u32 s{S_T0}, s{S_STO}, {rt*16*2048 + t*64}")
            e(f"buffer_store_dwordx4 {vr(RD,4)}, v{V_FD}, s[{SRD_O}:{SRD_O+3}], s{S_T0} offen {p.out_flags}")
        return seq, [st]

    def progressive_end(l):
        pre = [wr_(0,1,0), wr_(0,1,1), xr_(0,0,1), wr_(1,1,0), wr_(1,1,1)]
        post = [wr_(0,2,0), wr_(0,2,1), xr_(0,0,2), wr_(0,3,0), wr_(0,3,1), xr_(0,0,3), wr_(1,2,0), wr_(1,2,1), wr_(1,3,0), wr_(1,3,1)]
        fills = merge(spread(pre, 0, 15), {p.b15_gap: [lambda e: e("s_barrier")]}, spread(post, p.b15_gap+1 if p.b15_gap >= 4 else 5, 15))
        step(e, p, 0, fills)
        blocks = [(rt,0) for rt in range(4)] + [(rt,1) for rt in range(4)]
        wb = [wr_(ct,s,h) for ct in (2,3) for s in (1,2,3) for h in range(2)]
        pend = []; late = []
        for bi,(rt,t) in enumerate(blocks):
            buf = bi % 2
            reads = []
            if bi + 1 < len(blocks): reads += [xr_(1-buf, blocks[bi+1][0], s) for s in (1,2,3)]
            if t == 0: reads += wb[3*rt:3*rt+3]
            work = pend + late
            late = []
            nw = len(work); k = 0
            seq = [(ct,s) for ct in (2*t, 2*t+1) for s in (1,2,3)]
            for m,(ct,s) in enumerate(seq):
                a = acc(rt,ct)
                e.need(R(WP(ct,s),4)+R(XP(buf,s),4))
                e.mfma(a, WP(ct,s), XP(buf,s), a)
                if m < len(reads): reads[m](e)
                if bi == 4 and m == 5 and l < 2: e("s_barrier")
                take = (nw*(m+1))//6 - (nw*m)//6 if m >= 0 else 0
                for _ in range(take): work[k](e); k += 1
            assert k == nw
            pend, st = block_epilogue(l, bi, rt, t)
            if l == 2:
                pend = pend; late_next = st
                pend = pend + []
                late = []
                blocks_late.append(late_next)
                if len(blocks_late) >= 2: late = blocks_late.pop(0)
        stamp(e,p,3+3*l)
        for f in pend: f(e)
        for f in late: f(e)
        while blocks_late:
            for f in blocks_late.pop(0): f(e)

    def classic_end(l):
        stamp(e,p,3+3*l)
        enc_point(e, p, f"k{l}")
        TE = FR + 32
        e.after_mfma(R(ACC, 64))
        def body(flav):
            for rt in range(4):
                for t in range(2):
                    prs = []
                    for d in range(4):
                        ct = 2*t + d//2; dd = d % 2
                        k = (rt*2+t)*4+d
                        prs.append((TE + 2*(k % 16), res(rt,ct)+dd, acc(rt,ct)+2*dd, x0f(rt,ct)+2*dd))
                    for tm,r,a_,x in prs: e(f"v_pk_mul_f32 {vr(tm,2)}, {vr(x,2)}, {vr(a_,2)}")
                    for tm,r,a_,x in prs: e(f"v_cvt_pk_bf16_f32 v{r}, v{tm}, v{tm+1}")
                    r = res(rt,2*t)
                    so = S_STO if rt < 2 else S_STO2
                    sd = SRD_O if (l == 0 and p.x1_in_out) else SRD_WS
                    if not p.nostore: e(f"buffer_store_dwordx4 {vr(r,4)}, v{V_L16}, s[{sd}:{sd+3}], s{so} offen offset:{(rt%2)*2048+t*1024} {flav}")
                    k8 = rt*2 + t
                    if k8 >= p.dsw_lag:
                        kk = k8 - p.dsw_lag
                        e.lds_op(f"ds_write_b128 v{V_LW}, {vr(res(kk//2, 2*(kk%2)),4)} offset:{(kk//2)*2048+(kk%2)*1024}")
            for kk in range(max(8 - p.dsw_lag, 0), 8):
                e.lds_op(f"ds_write_b128 v{V_LW}, {vr(res(kk//2, 2*(kk%2)),4)} offset:{(kk//2)*2048+(kk%2)*1024}")
        if l in p.x_slow or p.force_fast is False:
            body("sc1")
        elif p.force_fast is True:
            body("")
        else:
            saved = list(e.lds)
            e(f"s_cmp_eq_u32 s{S_FAST}, 0\ns_cbranch_scc1 L_slow{l}")
            body("")
            e(f"s_branch L_join{l}")
            after = list(e.lds); e.lds = saved
            e.label(f"L_slow{l}")
            body("sc1")
            assert len(e.lds) == len(after)
            e.label(f"L_join{l}")

    for l in range(3):
        add_q = []
        blocks_late = []
        prog = l in p.prog_layers
        nj = 14 if prog else 16
        for j in range(nj):
            if p.exp_loop and l == 1:
                if j == 2:
                    e("s_mov_b32 s91, 3"); e.label("L_exploop")
                if 6 <= j <= 13:
                    if j == 6: e("s_sub_u32 s91, s91, 1\ns_cmp_lg_u32 s91, 0\ns_cbranch_scc1 L_exploop")
                    continue
            n = 16*l + j; slot = n % 4
            CUR['nowait'] = bool(p.exp_nowait) and l == 1 and 2 <= j <= 13
            CUR['b128'] = p.exp_b128 and l == 1 and 2 <= j <= 12
            fills = spread(frag_reads(1,1,slot), 0, 15, dbl=p.dbl0) if p.span0 is None else spread_even(frag_reads(1,1,slot), 0, p.span0)
            extra = {}
            if l == 0 and j == 0: extra = merge(extra, {4:[op_xc], 10:[op_touch]} if use_xc else {6:[op_touch]})
            if p.tlbw is not None and l == 0 and j == p.tlbw:
                def tw(e, sd, add):
                    e(f"s_add_u32 s{S_T0}, s{S_STO}, {add}\ns_mov_b32 m0, {LDS_DUMMY}")
                    e(f"v_and_b32 v{T+2}, 0, v{V_LANE}")
                    e(f"buffer_load_dword v{T+2}, s[{sd}:{sd+3}], s{S_T0} offen sc1 lds")
                extra = merge(extra, {6:[lambda e: tw(e, SRD_O if p.x1_in_out else SRD_WS, 0)], 12:[lambda e: tw(e, SRD_WS, WS_X2)]})
            if use_xc and l == 0 and j == 6:
                def xc_load(e):
                    e(f"v_and_b32 v{T}, 7, v{V_LANE}\nv_lshlrev_b32 v{T}, 2, v{T}\ns_lshl_b32 s{S_T0}, s{S_G}, 7\ns_add_u32 s{S_T0}, s{S_T0}, {WS_XC}")
                    e.vm_op(f"buffer_load_dword v{T+1}, v{T}, s[{SRD_WS}:{SRD_WS+3}], s{S_T0} offen sc1", ("xc",0))
                extra = merge(extra, {13:[xc_load]})
            if use_xc and l == 0 and j == 8:
                def xc_test(e):
                    e.vm_need([("xc",0)])
                    e(f"v_cmp_eq_u32 vcc, s{S_XT}, v{T+1}")
                    e("s_nop 1")
                    e(f"s_cmp_eq_u64 vcc, -1\ns_cselect_b32 s{S_FAST}, 1, 0")
                extra = merge(extra, {13:[xc_test]})
            if l == 0 and j == 1:
                items = []
                for ct in range(4):
                    items.append(lambda e, ct=ct: e(f"v_xor_b32 v{T+ct}, {ct*32}, v{V_LW}"))
                for rt in range(4):
                    for ct in range(4):
                        r = res(rt,ct)
                        items.append(lambda e, rt=rt, ct=ct, r=r: e.lds_op(f"ds_read_b64 {vr(r,2)}, v{T+ct} offset:{rt*2048}", R(r,2)))
                k=0
                for g in range(16):
                    extra[g] = items[k:k+2] if g < 4 else items[k:k+1]
                    k += len(extra[g])
                assert k == len(items)
                for rt in range(4):
                    for ct in range(4):
                        for d in range(2):
                            def f(e, rt=rt, ct=ct, d=d):
                                r = res(rt,ct)+d; x = x0f(rt,ct)+2*d
                                e.need([r])
                                e(f"v_lshlrev_b32 v{x}, 16, v{r}\nv_and_b32 v{x+1}, s{S_MASK}, v{r}")
                            unpack_q.append(f)
            if l > 0 and j == 0 and not p.pub_pre:
                def pub(e, l=l):
                    e("s_waitcnt vmcnt(0)"); e.vm = []
                    stamp(e, p, 10+l)
                    e(f"buffer_store_dword v{V_FD}, v{V_FO}, s[{SRD_WS}:{SRD_WS+3}], 0 offen offset:{(l-1)*128}")
                    e(f"buffer_store_dword v{V_FD}, v{V_FO}, s[{SRD_WS}:{SRD_WS+3}], s{S_FB} offen offset:{(l-1)*128} sc1")
                extra = merge(extra, {p.pub_gap: [pub]})
            if l > 0 and not (p.exp_loop and l == 1):
                if j == 2:
                    br = bias_reads(l)
                    extra = merge(extra, {11:[br[0]], 12:[br[1], br[2]], 13:[br[3], br[4]]})
                if j == 3:
                    bu = bias_unpack()
                    extra = merge(extra, {12+i:[f] for i,f in enumerate(bu)})
                    for r in range(4):
                        for m,(rt,ct) in enumerate(order):
                            add_q.append((m, lambda e, rt=rt, ct=ct, r=r: e(f"v_add_f32 v{acc(rt,ct)+r}, v{BIAS+ct*4+r}, v{acc(rt,ct)+r}")))
                elif j >= 4 and add_q:
                    extra = merge(extra, place_adds(add_q, [12,12,13,13,14,14,15,15]))
            if l == 0 and j >= 3 and unpack_q:
                items = unpack_q[:4]; unpack_q = unpack_q[4:]
                extra = merge(extra, {12+i:[it] for i,it in enumerate(items)})
            if j == 12:
                def addr_end(e, l=l):
                    if l == 0:
                        e(f"s_lshl_b32 s{S_T0}, s{S_A}, 13\ns_lshl_b32 s{S_T0+1}, s{S_B2}, 14\ns_add_u32 s{S_T0+1}, s{S_T0+1}, s{S_T0}\nv_add_u32 v{V_LW}, s{S_T0+1}, v{V_L16}")
                    if l == 2:
                        e(f"v_and_b32 v{TMP}, 15, v{V_LANE}\nv_lshrrev_b32 v{TMP+1}, 4, v{V_LANE}")
                        e(f"v_bfe_u32 v{TMP+2}, v{TMP}, 1, 2\nv_lshrrev_b32 v{TMP+3}, 1, v{TMP+1}\nv_xor_b32 v{TMP+2}, v{TMP+2}, v{TMP+3}\nv_lshlrev_b32 v{TMP+2}, 4, v{TMP+2}")
                        e(f"v_and_b32 v{TMP+3}, 1, v{TMP+1}\nv_lshlrev_b32 v{TMP+3}, 3, v{TMP+3}\nv_add_u32 v{TMP+2}, v{TMP+2}, v{TMP+3}")
                        e(f"v_lshlrev_b32 v{TMP+3}, 6, v{TMP}\nv_add_u32 v{TMP+2}, v{TMP+2}, v{TMP+3}\ns_lshl_b32 s{S_T0}, s{S_WAVE}, 11")
                        e(f"v_add_u32 v{V_LW}, s{S_T0}, v{TMP+2}\nv_xor_b32 v{V_T}, 32, v{V_LW}")
                        e(f"v_lshrrev_b32 v{TMP}, 2, v{V_LANE}\nv_and_b32 v{TMP+1}, 3, v{V_LANE}\nv_bfe_u32 v{TMP+2}, v{TMP}, 1, 2\nv_xor_b32 v{TMP+2}, v{TMP+2}, v{TMP+1}")
                        e(f"v_lshlrev_b32 v{TMP+2}, 4, v{TMP+2}\nv_lshlrev_b32 v{TMP+3}, 6, v{TMP}\nv_add_u32 v{TMP+2}, v{TMP+2}, v{TMP+3}\nv_add_u32 v{V_FO}, s{S_T0}, v{TMP+2}")
                        e(f"v_lshlrev_b32 v{TMP+2}, 11, v{TMP}\nv_lshlrev_b32 v{TMP+3}, 4, v{TMP+1}\nv_add_u32 v{V_FD}, v{TMP+2}, v{TMP+3}")
                        e(f"s_lshl_b32 s{S_STO}, s{S_G}, 18\ns_lshl_b32 s{S_T0}, s{S_A}, 17\ns_add_u32 s{S_STO}, s{S_STO}, s{S_T0}")
                        e(f"s_lshl_b32 s{S_T0}, s{S_C}, 8\ns_add_u32 s{S_STO}, s{S_STO}, s{S_T0}\ns_lshl_b32 s{S_T0}, s{S_B2}, 7\ns_add_u32 s{S_STO}, s{S_STO}, s{S_T0}")
                extra = merge(extra, {12:[addr_end]})
            step(e, p, 0, merge(fills, extra), first=(l == 0 and j == 0))
            fills = {}
            barrier = not (l > 0 and j == 0) and n != 47
            start = 0
            if p.cdma and j == 1 and l < 2:
                def cd_addr(e, l=l):
                    TT = TMP if l > 0 else FR
                    e(f"v_lshrrev_b32 v{T+1}, 4, v{V_LANE}\nv_bfe_u32 v{T+2}, v{V_LANE}, 1, 3\nv_xor_b32 v{T+2}, v{T+2}, v{T+1}\nv_lshlrev_b32 v{T+2}, 5, v{T+2}")
                    e(f"v_and_b32 v{T+3}, 1, v{V_LANE}\nv_lshlrev_b32 v{T+3}, 4, v{T+3}\nv_add_u32 v{T+2}, v{T+2}, v{T+3}\nv_lshlrev_b32 v{T+1}, 11, v{T+1}\nv_add_u32 v{T+2}, v{T+2}, v{T+1}")
                    e(f"v_xor_b32 v{T+2}, 128, v{T+2}\nv_add_u32 v{T+3}, {(24 if l == 0 else 12)*2048}, v{T+2}")
                fills = merge(fills, {8:[cd_addr]})
            seen = {}
            for (pl, pn, pg) in p.cpf:
                if pn == n:
                    k = seen.get(pl, sum(1 for q in p.cpf[:p.cpf.index((pl,pn,pg))] if q[0] == pl)); seen[pl] = k + 1
                    def pf(e, pl=pl, k=k):
                        e(f"s_add_u32 s{S_T0}, s{S_PFC}, {pl*(2<<20) + k*1024}\ns_mov_b32 m0, {LDS_DUMMY}")
                        e("s_nop 0")
                        e(f"buffer_load_dwordx4 v{V_L16}, s[{SRD_W}:{SRD_W+3}], s{S_T0} offen lds")
                    fills = merge(fills, {pg:[pf]})
            if barrier and cdma_stage(p, n+3):
                m = n + 3; lm, jm = divmod(m, 16)
                def cd_prep(e, m=m, lm=lm, jm=jm):
                    e(f"s_bfe_u32 s{S_KC}, s{S_TAB+jm//8}, {(4 << 16) | (4*(jm%8))}\ns_lshl_b32 s{S_SW}, s{S_KC}, 17")
                    e(f"s_add_u32 s{S_SW}, s{S_SW}, s{S_WB0 if lm == 0 else S_WB1}")
                    if lm > 0: e(f"s_add_u32 s{S_SW}, s{S_SW}, {lm*(2<<20)}")
                    e(f"s_add_u32 m0, s{S_LX}, {(m % 4)*16384}")
                def cd_issue(e, m=m):
                    e.vm_op(f"buffer_load_dwordx4 v{T+3}, s[{SRD_W}:{SRD_W+3}], s{S_SW} offen lds", ("cw", m))
                fills = merge(fills, {0:[cd_prep], p.cd_gap:[cd_issue]})
            if barrier:
                def bar(e, n=n):
                    e.vm_need([("cw", n+1)])
                    if CUR.get('nowait') and p.exp_nowait == 2: e.lds = []
                    e.lds_all()
                    if n in p.barw: e("s_memtime s[92:93]")
                    e("s_barrier")
                    if n in p.barw:
                        e(f"s_memtime s[94:95]\ns_waitcnt lgkmcnt(0)\ns_sub_u32 s94, s94, s92\nv_writelane_b32 v15, s94, {16+p.barw.index(n)}")
                    if n in (17, 33): stamp(e, p, 5 + 3*(n//16 - 1))
                    enc_point(e, p, f"mid{n}")
                fills = merge(fills, {p.bar_gap: [bar]})
                start = p.bar_gap + 1
            if j < 15:
                if p.span0 is None: fills = merge(fills, spread(frag_reads(0,0,(n+1)%4), start, 15, dbl=p.dbl if barrier else 0))
                else: fills = merge(fills, spread_even(frag_reads(0,0,(n+1)%4), start, 15 if barrier else p.span0))
            elif l < 2:
                fills = merge(fills, spread(frag_reads(0,0,(n+1)%4, only="w"), start, 15, dbl=2))
            if l > 0 and j >= 4 and add_q:
                fills = merge(fills, place_adds(add_q, [0,1,2,5,6,7]))
            if l == 0 and j >= 3 and unpack_q:
                items = unpack_q[:2]; unpack_q = unpack_q[2:]
                fills = merge(fills, {i:[it] for i,it in enumerate(items)})
            step(e, p, 1, fills)
        assert not unpack_q and not add_q, (len(unpack_q), len(add_q))
        if prog: progressive_end(l)
        else: classic_end(l)
        assert prog or l < 2
        if l < 2:
            e(f"s_add_u32 s{S_STO}, s{S_STO}, {WS_X2-WS_X1}\ns_add_u32 s{S_STO2}, s{S_STO2}, {WS_X2-WS_X1}")
            if l == 0:
                e(f"s_lshl_b32 s{S_T0}, s{S_A}, 13\nv_add_u32 v{V_XA0}, s{S_T0}, v{V_L16}\nv_add_u32 v{V_XA1}, 1024, v{V_XA0}")
            if p.pub_pre:
                e("s_waitcnt vmcnt(0)")
                stamp(e, p, 11+l)
                e(f"buffer_store_dword v{V_FD}, v{V_FO}, s[{SRD_WS}:{SRD_WS+3}], 0 offen offset:{l*128}")
                e(f"buffer_store_dword v{V_FD}, v{V_FO}, s[{SRD_WS}:{SRD_WS+3}], s{S_FB} offen offset:{l*128} sc1")
            e.lds_all()
            stamp(e,p,4+3*l)
            e("s_barrier")
            for f in frag_reads(0,0,0, only=None if prog else "x"): f(e)
            e("s_nop 1")
        else:
            stamp(e,p,4+3*l)
    if p.stamps:
        e("s_waitcnt vmcnt(0)")
        stamp(e,p,15)
        e("v_mov_b32 v60, v15")
        stamp_out(e,p,60)
    if p.enc:
        what, M, wg = p.enc
        if wg != "all": e(f"s_cmp_eq_u32 s2, {wg}\ns_cbranch_scc0 L_encd")
        e(f"s_cmp_eq_u32 s{S_WAVE}, 0\ns_cbranch_scc0 L_encd")
        e("s_waitcnt vmcnt(0)\ns_memrealtime s[64:65]\ns_waitcnt lgkmcnt(0)")
        if what == "end": e("s_mov_b32 s66, s64")
        e(f"s_sub_u32 s66, s66, s68\ns_mul_i32 s66, s66, {M}")
        e.label("L_encs")
        e("s_memrealtime s[62:63]\ns_waitcnt lgkmcnt(0)\ns_sub_u32 s62, s62, s64\ns_cmp_lt_u32 s62, s66\ns_cbranch_scc1 L_encs")
        e.label("L_encd")
    e("s_endpgm")

def gen_loader(e, p):
    e.label("L_loader")
    e.lds = []; e.vm = []
    XV0=1; XV1=5; WV0=6; WV1=10; T=14
    e(f"s_sub_u32 s{S_A}, s{S_WAVE}, 4")
    e("v_and_b32 v0, 63, v0")
    e(f"v_lshrrev_b32 v{T}, 3, v0\nv_and_b32 v{T+1}, 7, v0\nv_lshrrev_b32 v{T+2}, 4, v0")
    e(f"v_xor_b32 v{T+3}, v{T+1}, v{T+2}\nv_lshlrev_b32 v{T+3}, 4, v{T+3}\nv_lshlrev_b32 v{T+4}, 11, v{T}\nv_add_u32 v{XV0}, v{T+3}, v{T+4}")
    e(f"v_xor_b32 v{T+3}, 64, v{XV0}")
    e(f"v_add_u32 v{XV0+1}, {8*2048-1024}, v{T+3}\nv_add_u32 v{XV0+2}, {16*2048-2048}, v{XV0}\nv_add_u32 v{XV0+3}, {24*2048-3072}, v{T+3}")
    e(f"v_bfe_u32 v{T+3}, v0, 1, 3\nv_xor_b32 v{T+3}, v{T+3}, v{T+2}\nv_lshlrev_b32 v{T+3}, 5, v{T+3}")
    e(f"v_and_b32 v{T+4}, 1, v0\nv_lshlrev_b32 v{T+4}, 4, v{T+4}\nv_add_u32 v{T+3}, v{T+3}, v{T+4}")
    e(f"v_lshlrev_b32 v{T+4}, 11, v{T+2}\nv_add_u32 v{WV0}, v{T+3}, v{T+4}")
    e(f"v_xor_b32 v{T+3}, 128, v{WV0}")
    e(f"v_add_u32 v{WV0+1}, {8*2048-1024}, v{T+3}\nv_add_u32 v{WV0+2}, {16*2048-2048}, v{WV0}\nv_add_u32 v{WV0+3}, {24*2048-3072}, v{T+3}")
    e(f"s_lshl_b32 s{S_XB0}, s{S_G}, 18\ns_lshl_b32 s{S_T0}, s{S_A}, 16\ns_add_u32 s{S_XB0}, s{S_XB0}, s{S_T0}")
    e(f"s_lshl_b32 s{S_LX}, s{S_A}, 12")
    e(f"s_lshr_b32 s{S_T0}, s{S_A}, 1\ns_lshl_b32 s{S_T0}, s{S_T0}, 5\ns_and_b32 s{S_T0+1}, s{S_A}, 1\ns_lshl_b32 s{S_T0+1}, s{S_T0+1}, 2\ns_add_u32 s{S_T0}, s{S_T0}, s{S_T0+1}")
    e(f"s_lshl_b32 s{S_WB0}, s{S_T0}, 11\ns_lshl_b32 s{S_T0+1}, s{S_C}, 8\ns_add_u32 s{S_WB0}, s{S_WB0}, s{S_T0+1}")
    tab_ready = [False]
    def kc_slow(j):
        if j < 2 or not p.mrot:
            e(f"s_lshl_b32 s{S_KC}, s{S_C}, 1\ns_add_u32 s{S_KC}, s{S_KC}, {j}\ns_and_b32 s{S_KC}, s{S_KC}, 15")
        else:
            e(f"s_add_u32 s{S_KC}, s{S_OFF}, {j-2}\ns_cmp_ge_u32 s{S_KC}, 14\ns_cselect_b32 s{S_T0+5}, 14, 0\ns_sub_u32 s{S_KC}, s{S_KC}, s{S_T0+5}")
            e(f"s_lshl_b32 s{S_T0+5}, s{S_C}, 1\ns_add_u32 s{S_KC}, s{S_KC}, s{S_T0+5}\ns_add_u32 s{S_KC}, s{S_KC}, 2\ns_and_b32 s{S_KC}, s{S_KC}, 15")
    def build_tab():
        e(f"s_mov_b32 s{S_TAB}, 0\ns_mov_b32 s{S_TAB+1}, 0")
        for j in range(16):
            kc_slow(j)
            e(f"s_lshl_b32 s{S_KC}, s{S_KC}, {4*(j%8)}\ns_or_b32 s{S_TAB+j//8}, s{S_TAB+j//8}, s{S_KC}")
        tab_ready[0] = True
    def kc(j):
        if tab_ready[0]: e(f"s_bfe_u32 s{S_KC}, s{S_TAB+j//8}, {(4 << 16) | (4*(j%8))}")
        else: kc_slow(j)
    def need_mask(dst):
        e(f"s_lshr_b32 s{dst}, s{S_KC}, 1\ns_lshl_b32 s{dst}, s{dst}, 2\ns_and_b32 s{S_T0+5}, s{S_KC}, 1\ns_add_u32 s{dst}, s{dst}, s{S_T0+5}")
        e(f"s_lshl_b32 s{dst}, 5, s{dst}")
    def ensure(n, also=None):
        l = n // 16
        if p.nosync:
            kc(n % 16); return
        if also is None:
            e(f"s_cmp_eq_u32 s{S_RDY}, -1\ns_cbranch_scc1 L_ok{n}")
        if also is not None:
            kc(also % 16); need_mask(S_NEED2)
        kc(n % 16); need_mask(S_NEED)
        if also is not None: e(f"s_or_b32 s{S_NEED}, s{S_NEED}, s{S_NEED2}")
        e(f"s_and_b32 s{S_T0+5}, s{S_RDY}, s{S_NEED}\ns_cmp_eq_u32 s{S_T0+5}, s{S_NEED}\ns_cbranch_scc1 L_ok{n}")
        e(f"s_mov_b32 s{S_CNT}, 0")
        e.label(f"L_poll{n}")
        e(f"s_cmp_ge_u32 s{S_CNT}, {p.a_only}\ns_cselect_b32 s{S_T0+5}, 1, 0\ns_and_b32 s{S_T0+5}, s{S_T0+5}, s{S_CNT}\ns_mul_i32 s{S_PO}, s{S_T0+5}, {WS_FLAGB-WS_FLAG}")
        e(f"buffer_load_dword v{T+2}, v{T+1}, s[{SRD_WS}:{SRD_WS+3}], s{S_PO} offen offset:{(l-1)*128} sc1")
        e("s_waitcnt vmcnt(0)")
        e(f"v_cmp_eq_u32 vcc, s{S_TAG}, v{T+2}")
        e("s_nop 1")
        e(f"s_or_b32 s{S_RDY}, s{S_RDY}, vcc_lo")
        e(f"s_and_b32 s{S_T0+5}, s{S_RDY}, s{S_NEED}\ns_cmp_eq_u32 s{S_T0+5}, s{S_NEED}\ns_cbranch_scc1 L_ok{n}")
        e(f"s_add_u32 s{S_CNT}, s{S_CNT}, 1\ns_cmp_lg_u32 s{S_CNT}, {p.poll_max}")
        e(f"s_cbranch_scc1 L_poll{n}")
        e.label(f"L_ok{n}")
    def poll_async(l, tag):
        if p.nosync: return
        e.vm_op(f"buffer_load_dword v{T+5}, v{T+1}, s[{SRD_WS}:{SRD_WS+3}], 0 offen offset:{(l-1)*128} sc1", tag)
    def poll_collect(tag):
        if p.nosync: return
        e.vm_need([tag])
        e(f"v_cmp_eq_u32 vcc, s{S_TAG}, v{T+5}")
        e("s_nop 1")
        e(f"s_or_b32 s{S_RDY}, s{S_RDY}, vcc_lo")
    def prep_x(n, checked=False, so=None):
        l, j = divmod(n, 16); so = so or S_SO
        if l > 0 and not checked:
            ensure(n); kc(j)
        if l == 0:
            e(f"s_lshl_b32 s{so}, s{S_KC}, 7\ns_add_u32 s{so}, s{so}, s{S_XB0}")
        else:
            e(f"s_lshl_b32 s{so}, s{S_KC}, 14\ns_add_u32 s{so}, s{so}, s{S_XBL}")
    def issue_x(n, so=None, mid=None):
        l, j = divmod(n, 16); slot = n % 4; so = so or S_SO
        e(f"s_add_u32 m0, s{S_LX}, {LDS_X + slot*16384}")
        e("s_nop 0")
        for ee in range(4 if not (p.exp_nox and l == 1 and j >= 5) else p.exp_nox - 1):
            if l == 0: e.vm_op(f"buffer_load_dwordx4 v{XV0+ee}, s[{SRD_X}:{SRD_X+3}], s{so} offen offset:{ee*1024} {p.x0f01 if n < 2 else p.x0f} lds", ("x",n))
            else:
                sd = SRD_O if (l == 1 and p.x1_in_out) else SRD_WS
                if p.exp_vgpr and l == 1 and j >= 5:
                    e.vm_op(f"buffer_load_dwordx4 v[{64+4*ee}:{67+4*ee}], v{XV1}, s[{sd}:{sd+3}], s{so} offen offset:{ee*1024} {p.x_flags}", ("x",n))
                elif p.tid:
                    st_ = SRD_T1 if l == 1 else SRD_T2
                    e.vm_op(f"buffer_load_dwordx4 off, s[{st_}:{st_+3}], s{so} offset:{ee*1024} {p.x_flags} lds", ("x",n))
                else:
                    fl = p.x_flags + (" nt" if ((l == 2 and j >= p.x2_last) or (l == 1 and j >= p.x1_last)) else "")
                    e.vm_op(f"buffer_load_dwordx4 v{XV1}, s[{sd}:{sd+3}], s{so} offen offset:{ee*1024} {fl} lds", ("x",n))
            if ee == 0 and mid: mid()
    def prep_w(n, sreg=None):
        l, j = divmod(n, 16); sreg = sreg or S_SW
        kc(j)
        if l > 0 and j == 0:
            e(f"s_add_u32 s{S_WBL}, s{S_WB1}, {0 if p.wsame else l*(2<<20)}")
        e(f"s_lshl_b32 s{sreg}, s{S_KC}, 17\ns_add_u32 s{sreg}, s{sreg}, s{S_WB0 if l == 0 else S_WBL}")
    m0_now = [None]
    def set_m0(val):
        if m0_now[0] == val:
            m0_now[0] = None; return
        e(f"s_add_u32 m0, s{S_LX}, {val}")
        e("s_nop 0")
    def preset_m0(val):
        e(f"s_add_u32 m0, s{S_LX}, {val}"); m0_now[0] = val
    def issue_w(n, sreg=None, mid=None):
        l, j = divmod(n, 16); slot = n % 4; sreg = sreg or S_SW
        set_m0(LDS_W + slot*16384)
        wv = WV0 if l == 0 else WV1
        for ee in range(3 if cdma_stage(p, n) else 4):
            e.vm_op(f"buffer_load_dwordx4 v{wv+ee}, s[{SRD_W}:{SRD_W+3}], s{sreg} offen offset:{ee*1024} {(p.w0lead if 2 <= n <= 5 and p.w0lead else p.w0f) if n < 16 else ''} lds", ("w",n))
            if ee == 0 and mid: mid()
    def dma_x(n, checked=False):
        kc(n % 16)
        prep_x(n, checked); issue_x(n)
    def dma_w(n):
        prep_w(n); issue_w(n)
    def plan(n):
        l, j = divmod(n, 16)
        sw, sw2, so = (S_SW, S_SWB, S_SO) if n % 2 == 0 else (S_SW2, S_SWB2, S_SO2)
        prog = l in p.prog_layers
        if p.dw == 4:
            xs = [n+3] if j <= 12 else []
            last_w = 47 if l == 2 else (16*l + 17 if prog else 16*l + 19)
            wsn = [m for m in ([n+3, n+4] if (l > 0 and j == 1) else [n+4]) if m <= last_w]
            def prep():
                for m, reg in zip(wsn, (sw, sw2)): prep_w(m, reg)
                for m in xs:
                    kc(m % 16); prep_x(m, so=so)
            def issue(mid):
                done = [False]
                def mid1():
                    if not done[0]:
                        done[0] = True
                        if mid: mid()
                if len(wsn) == 2: issue_w(wsn[0], sw, mid1)
                for m in xs: issue_x(m, so, mid1)
                if wsn: issue_w(wsn[-1], (sw, sw2)[len(wsn)-1], mid1)
                mid1()
            return (prep, issue)
        if j == 13:
            if l == 2: return (lambda: None, lambda mid: mid and mid())
            return (lambda: (prep_w(n+3, sw), prep_w(n+4, sw2)), lambda mid: (issue_w(n+3, sw, mid), issue_w(n+4, sw2)))
        if j in (14, 15):
            if l == 2: return (lambda: None, lambda mid: mid and mid())
            return (lambda: prep_w(n+4, sw), lambda mid: issue_w(n+4, sw, mid))
        m = n + 3
        return (lambda: (prep_w(m, sw), prep_x(m, so=so)), lambda mid: (issue_w(m, sw, mid), issue_x(m, so)))

    e("s_waitcnt lgkmcnt(0)")
    srd(e, SRD_X, 4, 8<<20); srd(e, SRD_W, 6, 6<<20)
    if p.stamps: e("v_mov_b32 v60, 0\nv_writelane_b32 v60, s66, 0\nv_writelane_b32 v60, s68, 32")
    def w0_touch(k0, k1):
        if k0 == 0:
            e(f"s_lshl_b32 s{S_T0}, s2, 13\ns_lshl_b32 s{S_T0+1}, s{S_A}, 11\ns_add_u32 s{S_T0}, s{S_T0}, s{S_T0+1}")
            e(f"s_add_u32 s{S_PB}, s6, s{S_T0}\ns_addc_u32 s{S_PB+1}, s7, 0")
        for k in range(k0, k1): e(f"s_load_dword s{80 + k % 16}, s[{S_PB}:{S_PB+1}], {k * 64}")
    if p.w0pf and p.w0pf_pos == 0: w0_touch(0, p.w0pf)
    dma_x(0); dma_w(0)
    if p.w0pf and p.w0pf_pos == 1: w0_touch(0, p.w0pf)
    srd(e, SRD_WS, 40, WS_SIZE); srd(e, SRD_B, 44, 6144); srd(e, SRD_O, 42, 8<<20)
    if p.tid:
        for b, lo in ((SRD_T1, 42 if p.x1_in_out else 40), (SRD_T2, 40)):
            e(f"s_mov_b32 s{b}, s{lo}\ns_and_b32 s{b+1}, s{lo+1}, 0xffff\ns_or_b32 s{b+1}, s{b+1}, 0x100000\ns_mov_b32 s{b+2}, 64\ns_mov_b32 s{b+3}, 0x00800000")
    e(f"s_min_u32 s{S_T0}, s{S_A}, 2\ns_lshl_b32 s{S_T0+1}, s{S_T0}, 8\ns_add_u32 m0, s{S_T0+1}, {LDS_B}")
    e(f"s_lshl_b32 s{S_T0+1}, s{S_T0}, 11\ns_lshl_b32 s{S_T0+2}, s{S_C}, 8\ns_add_u32 s{S_T0+1}, s{S_T0+1}, s{S_T0+2}")
    e(f"v_lshlrev_b32 v{T}, 2, v0")
    e.vm_op(f"buffer_load_dword v{T}, s[{SRD_B}:{SRD_B+3}], s{S_T0+1} offen lds", ("b",0))
    dma_x(1); dma_w(1)
    e(f"v_lshlrev_b32 v{XV1}, 4, v0")
    e(f"v_xor_b32 v{T+3}, 128, v{WV0}")
    e(f"v_mov_b32 v{WV1}, v{WV0}\nv_add_u32 v{WV1+1}, {4*2048-1024}, v{T+3}\nv_add_u32 v{WV1+2}, {8*2048-2048}, v{WV0}\nv_add_u32 v{WV1+3}, {12*2048-3072}, v{T+3}")
    e(f"s_lshl_b32 s{S_XB1}, s{S_G}, 18\ns_add_u32 s{S_XB1}, s{S_XB1}, s{S_LX}")
    e(f"s_lshl_b32 s{S_WB1}, s{S_A}, 15\ns_lshl_b32 s{S_T0+1}, s{S_C}, 8\ns_add_u32 s{S_WB1}, s{S_WB1}, s{S_T0+1}")
    e(f"s_lshr_b32 s{S_T0}, s{S_G}, 3\ns_lshl_b32 s{S_T0}, s{S_T0}, 2\ns_lshr_b32 s{S_OFF}, {sum(o << (4*i) for i,o in enumerate(p.moff))}, s{S_T0}\ns_and_b32 s{S_OFF}, s{S_OFF}, 15")
    e(f"s_lshl_b32 s{S_T0}, s{S_G}, 8\ns_add_u32 s{S_T0}, s{S_T0}, {WS_FLAG}")
    e(f"v_and_b32 v{T+1}, 31, v0\nv_lshlrev_b32 v{T+1}, 2, v{T+1}\nv_add_u32 v{T+1}, s{S_T0}, v{T+1}")
    build_tab()
    stamp(e,p,1,LSR)
    e.vm_need([("x",0),("w",0),("b",0)])
    stamp(e,p,2,LSR)
    e("s_barrier")
    if p.dw == 4:
        dma_x(2); dma_w(2); dma_w(3)
    else:
        dma_w(2); dma_x(2)
    if p.w0pf and p.w0pf < 32: w0_touch(p.w0pf, min(32, p.w0pf + 12))
    prepped = set()
    e.pace = p.exp_pace
    for l in range(3):
        prog = l in p.prog_layers
        for j in range(14 if prog else 16):
            n = 16*l + j
            if l > 0 and j == 0: continue
            if n == 47: continue
            prep, issue = plan(n)
            polled = l > 0 and 1 <= j <= p.apoll
            if n not in prepped and not polled: prep()
            e.vm_need([("x",n+1),("w",n+1)])
            if polled:
                poll_collect(("ap", n-1)); prep()
            if n in (17,33): stamp(e,p,5+3*(n//16-1),LSR)
            if p.stage_stamps is not False and n//16 == p.stage_stamps: stamp(e,p,16+n%16,LSR)
            if p.m0pre and p.dw == 3:
                first_w = (n+3 if j <= 13 else n+4) if not (l == 2 and j >= 13) else None
                if first_w is not None and first_w <= 47: preset_m0(LDS_W + (first_w % 4)*16384)
            if n in p.barw: e("s_memtime s[92:93]")
            e("s_barrier")
            if n in p.barw:
                e(f"s_memtime s[94:95]\ns_waitcnt lgkmcnt(0)\ns_sub_u32 s94, s94, s92\nv_writelane_b32 v60, s94, {16+p.barw.index(n)}")
            for _ in range(p.ldelay): e("s_nop 15")
            if l > 0 and 1 <= j < p.apoll: poll_async(l, ("ap", n))
            def mid(n=n, l=l, j=j):
                if n == 0:
                    e(f"s_lshl_b32 s{S_T0}, s{S_G}, 7\ns_add_u32 s{S_T0}, s{S_T0}, {WS_V}")
                    e(f"s_load_dword s{S_TAG}, s[40:41], s{S_T0}")
                if n == 12:
                    e("s_waitcnt lgkmcnt(0)")
                    e(f"s_add_u32 s{S_TAG}, s{S_TAG}, {TAGK}")
                if p.lspf and l < 2:
                    ntouch = 2048 // p.lspf
                    ls, per = p.lspf_start, p.lspf_per
                    k0 = (j - ls) * per
                    if j == ls:
                        e(f"s_lshl_b32 s{S_T0}, s2, 13\ns_lshl_b32 s{S_T0+1}, s{S_A}, 11\ns_add_u32 s{S_T0}, s{S_T0}, s{S_T0+1}\ns_add_u32 s{S_T0}, s{S_T0}, {(l+1)*(2<<20)}")
                        e(f"s_add_u32 s{S_PB}, s6, s{S_T0}\ns_addc_u32 s{S_PB+1}, s7, 0")
                    for k in (range(max(k0,0), min(k0 + per, ntouch)) if j >= ls else []):
                        e(f"s_load_dword s{80 + k % (4 if p.tid else 16)}, s[{S_PB}:{S_PB+1}], {k * p.lspf}")
                nx = n + 1
                l2, j2 = divmod(nx, 16)
                if l2 == l and j2 <= (13 if prog else 15) and nx != 47 and not (l2 > 0 and 1 <= j2 <= p.apoll):
                    plan(nx)[0](); prepped.add(nx)
            issue(mid)
        if prog:
            e.vm_need([("x",16*l+15),("w",16*l+15)])
            e("s_barrier")
        if l < 2:
            n1 = 16*(l+1)
            if prog:
                prep_w(n1+2); e(f"s_mov_b32 s{S_SW2}, s{S_SW}"); prep_w(n1+3)
                e("s_barrier")
                issue_w(n1+2, S_SW2); issue_w(n1+3, S_SW)
            e.vm_need([("w",n1),("w",n1+1)])
            e("s_barrier")
            stamp(e,p,3+3*l,LSR)
            e(f"s_lshl_b32 s{S_RDY}, s{S_C}, 2\ns_lshl_b32 s{S_RDY}, 15, s{S_RDY}")
            e(f"s_add_u32 s{S_XBL}, s{S_XB1}, {WS_X2 if l == 1 else WS_X1}")
            ensure(n1+2, also=n1+3)
            dma_x(n1+2, True); stamp(e,p,4+3*l,LSR)
            if p.apoll: poll_async(l+1, ("ap", n1))
            dma_x(n1+3, True)
        else:
            e(f"s_cmp_eq_u32 s{S_C}, 0\ns_cbranch_scc0 L_nov\ns_cmp_eq_u32 s{S_A}, 0\ns_cbranch_scc0 L_nov")
            e(f"v_mov_b32 v{T+3}, s{S_TAG}\ns_lshl_b32 s{S_T0}, s{S_G}, 7\ns_add_u32 s{S_T0}, s{S_T0}, {WS_V}\nv_mov_b32 v{T+4}, s{S_T0}")
            e(f"buffer_store_dword v{T+3}, v{T+4}, s[{SRD_WS}:{SRD_WS+3}], 0 offen sc1")
            e.label("L_nov")
    if p.stamps:
        e("s_waitcnt vmcnt(0)")
        stamp(e,p,15,LSR)
        stamp_out(e,p,60)

def gen(p=None):
    p = p or P()
    CUR["order"] = p.order
    e = Em()
    hdr = f"""; DCN-v2 cross network, 3 layers fused in one launch.  Generated by my own generator script.
; @launch grid=(256,1,1) block=(512,1,1) lds={LDS_SIZE}
.amdgcn_target "amdgcn-amd-amdhsa--gfx950"
.text
.globl {KNAME}
.p2align 8
.type {KNAME},@function
{KNAME}:"""
    e(f"s_cmp_ge_u32 s2, 256\ns_cbranch_scc1 L_end")
    if p.stamps: e("s_memtime s[66:67]\ns_memrealtime s[68:69]\ns_waitcnt lgkmcnt(0)")
    if p.enc: e("s_memrealtime s[68:69]")
    e("s_load_dwordx4 s[4:7], s[0:1], 0")
    e("s_load_dwordx2 s[44:45], s[0:1], 16")
    e("s_load_dwordx2 s[42:43], s[0:1], 24")
    e("s_load_dwordx2 s[40:41], s[0:1], 40")
    e(f"v_lshrrev_b32 v1, 6, v0\ns_lshr_b32 s{S_C}, s2, 3\ns_and_b32 s{S_C}, s{S_C}, 7")
    e(f"s_lshr_b32 s{S_G}, s2, 6\ns_lshl_b32 s{S_G}, s{S_G}, 3\ns_and_b32 s{S_T0}, s2, 7\ns_add_u32 s{S_G}, s{S_G}, s{S_T0}")
    e(f"v_readfirstlane_b32 s{S_WAVE}, v1")
    e("s_nop 3")
    e(f"s_cmp_ge_u32 s{S_WAVE}, 4\ns_cbranch_scc1 L_loader")
    gen_compute(e, p)
    gen_loader(e, p)
    e.label("L_end")
    e("s_endpgm")
    tail = f""".section .rodata,"a"
.p2align 6
.amdhsa_kernel {KNAME}
  .amdhsa_next_free_vgpr 256
  .amdhsa_next_free_sgpr 102
  .amdhsa_accum_offset 256
  .amdhsa_group_segment_fixed_size 0
  .amdhsa_kernarg_size 48
  .amdhsa_user_sgpr_count 2
  .amdhsa_user_sgpr_kernarg_segment_ptr 1
  .amdhsa_system_sgpr_workgroup_id_x 1
.end_amdhsa_kernel
"""
    return hdr + "\n" + e.text() + "\n" + tail

if __name__ == "__main__":
    p = P()
    for a in sys.argv[1:]:
        k, v = a.split("=")
        setattr(p, k, eval(v))
    sys.stdout.write(gen(p))
```

```python
import sys

KNAME = "standalone__cross_network_dcn__recsys_kernel"

class P:
    stamps = False; stage_stamps = False
    bar_gap = 3; dbl = 0; dbl0 = 0
    prio = 2
    poll_max = 20000
    a_only = 12
    nosync = False
    order = "c"
    mrot = True
    out_flags = "nt"
    st_flags = "sc1"
    x_flags = "sc1"
    wsame = False
    stampreg = 15
    pub_gap = 3
    apoll = 2
    lspf = 0; lspf_per = 3; lspf_start = 1
    nostore = False
    prog_layers = (2,)
    force_fast = None
    x_slow = ()
    x1_in_out = True
    b15_gap = 4
    dw = 3
    lpf0 = None
    x1_last = 16
    x2_last = 10
    tlbw = None
    cpf = ((1,4,1),(1,5,1),(2,17,1),(2,17,2))
    enc = None
    x0f01 = ''; x0f = ''; w0f = ''
    w0lead = ''
    w0pf = 0
    w0pf_pos = 1
    dsw_lag = 0
    exp_b128 = False
    span0 = None
    exp_nowait = 0
    exp_loop = False
    exp_pace = 0
    barw = ()
    tid = False
    exp_vgpr = False
    coarse = 0
    exp_nox = 0
    cdma = 0
    ldelay = 0
    cd_gap = 2
    m0pre = False
    moff = (0,4,8,12)
    prog_pk = False
    pub_pre = False
    init = "B"

LDS_X = 0
LDS_W = 65536
LDS_B = 131072
LDS_DUMMY = 131072 + 1024
LDS_SIZE = 131072 + 1024 + 1024
WS_X1 = 0
WS_X2 = 8 << 20
WS_FLAG = 16 << 20
WS_FLAGB = (16 << 20) + 0x8000
WS_V = (16 << 20) + 0x10000
WS_XC = (16 << 20) + 0x18000
WS_STAMP = (17 << 20)
WS_SIZE = (18 << 20)
TAGK = 0x6A09E667
TAGX = 0x3C6EF372

class Em:
    def __init__(s):
        s.L = []; s.lds = []; s.vm = []; s.n = 0; s.mw = {}
    def __call__(s, t):
        for x in t.split("\n"):
            x = x.strip()
            if not x: continue
            if x.endswith(":"): s.L.append(x); continue
            s.L.append("    " + x)
            s.n += (int(x.split()[1]) + 1) if x.startswith("s_nop") else 1
    def label(s, n): s.L.append(n + ":")
    def lds_op(s, text, dst=()):
        s(text); s.lds.append(set(dst))
    def need(s, regs):
        regs = set(regs); last = -1
        for i, d in enumerate(s.lds):
            if d & regs: last = i
        if last >= 0:
            n = min(len(s.lds) - 1 - last, 15)
            s(f"s_waitcnt lgkmcnt({n})")
            s.lds = s.lds[len(s.lds)-n:] if n else []
    def lds_all(s):
        if s.lds: s("s_waitcnt lgkmcnt(0)")
        s.lds = []
    pace = 0
    def vm_op(s, text, tag):
        s(text); s.vm.append(tag)
        if s.pace and " lds" in text and "dwordx4" in text:
            k = s.pace
            while k > 0:
                s(f"s_nop {min(k,16)-1}"); k -= 16
    def vm_need(s, tags):
        last = -1
        for i, t in enumerate(s.vm):
            if t in tags: last = i
        if last >= 0:
            n = len(s.vm) - 1 - last
            assert n <= 63, n
            s(f"s_waitcnt vmcnt({n})")
            s.vm = s.vm[last+1:]
    def mfma(s, a, w, x, c):
        s(f"v_mfma_f32_16x16x32_bf16 {vr(a,4)}, {vr(w,4)}, {vr(x,4)}, {vr(c,4)}")
        for r in range(a, a+4): s.mw[r] = s.n
    def after_mfma(s, regs):
        last = max([s.mw.get(r, -99) for r in regs])
        gap = s.n - last
        if gap < 9: s(f"s_nop {9 - gap - 1}")
    def text(s): return "\n".join(s.L)

def R(a, n): return list(range(a, a+n))
def vr(a, n): return f"v[{a}:{a+n-1}]" if n > 1 else f"v{a}"

V_LANE = 0
V_XA0, V_XA1 = 1, 2
V_WA = 3
V_LW = 7
V_L16 = 8
V_FO = 9; V_FD = 10
V_T = 11
ACC = 16; FR = 80; X0F = 144; RES = 208; BIAS = 240
def acc(rt, ct): return ACC + (rt*4+ct)*4
def xfr(st, rt): return FR + st*32 + rt*4
def wfr(st, ct): return FR + st*32 + 16 + ct*4
def x0f(rt, ct): return X0F + (rt*4+ct)*4
def res(rt, ct): return RES + (rt*4+ct)*2

SNAKE_R = [(rt, ct) for rt in range(4) for ct in (range(4) if rt % 2 == 0 else range(3, -1, -1))]
SNAKE_C = [(rt, ct) for ct in range(4) for rt in (range(4) if ct % 2 == 0 else range(3, -1, -1))]
ORDER = {"r": SNAKE_R, "c": SNAKE_C}
CUR = {"order": "c"}

S_WAVE=3
SRD_X=8; SRD_W=12; SRD_WS=16; SRD_O=20; SRD_B=24
S_G=28; S_C=29; S_A=30; S_B2=31
S_TAG=32; S_MASK=33
S_T0=34
S_SWB=46; S_XB0=48; S_XB1=49; S_SWB2=50; S_WB0=51; S_WB1=52; S_LX=53; S_KC=54; S_SO=55; S_SW=56; S_CNT=57; S_XBL=58
S_FB=59; S_STO=60; S_STO2=61
S_RDY=70; S_NEED=71; S_OFF=72; S_PO=73; S_FAST=74; S_XT=75; S_NEED2=76; S_SW2=78; S_WBL=79
S_PB=96; S_TAB=98; S_SO2=100
SRD_T1=84; SRD_T2=88; S_PFC=77

LSR = 60
def stamp(e, p, idx, reg=None):
    if not p.stamps: return
    reg = reg or p.stampreg
    e(f"s_memtime s[62:63]\ns_memrealtime s[64:65]\ns_waitcnt lgkmcnt(0)\nv_writelane_b32 v{reg}, s62, {idx}\nv_writelane_b32 v{reg}, s64, {idx+32}")
    e.lds = []
def stamp_out(e, p, reg):
    if not p.stamps: return
    e(f"s_lshl_b32 s62, s2, 3\ns_add_u32 s62, s62, s{S_WAVE}\ns_lshl_b32 s62, s62, 8\ns_add_u32 s62, s62, {WS_STAMP}")
    e(f"v_mbcnt_lo_u32_b32 v40, -1, 0\nv_mbcnt_hi_u32_b32 v40, -1, v40\nv_lshlrev_b32 v40, 2, v40")
    e(f"buffer_store_dword v{reg}, v40, s[{SRD_WS}:{SRD_WS+3}], s62 offen")

def enc_point(e, p, name):
    if p.enc and p.enc[0] == name:
        e("s_memrealtime s[66:67]\ns_waitcnt lgkmcnt(0)"); e.lds = []
def srd(e, b, lo, size):
    e(f"s_mov_b32 s{b}, s{lo}\ns_mov_b32 s{b+1}, s{lo+1}\ns_mov_b32 s{b+2}, {size}\ns_mov_b32 s{b+3}, 0x00020000")

def xread_to(e, r, rt, u, slot):
    e.lds_op(f"ds_read_b128 {vr(r,4)}, v{V_XA0+u} offset:{slot*16384 + rt*2048}", R(r,4))
def wread_to(e, r, ct, u, h, slot):
    if CUR.get('b128'):
        if h == 0: e.lds_op(f"ds_read_b128 {vr(r,4)}, v{V_L16} offset:{(slot*16384 + u*8192 + ct*1024) % 65536}", R(r,4))
        return
    e.lds_op(f"ds_read_b64_tr_b16 {vr(r+2*h,2)}, v{V_WA+ct} offset:{slot*16384 + u*8192 + h*4096}", R(r+2*h,2))

def frag_reads(st, u, slot, only=None):
    def W(ct,h): return lambda e: wread_to(e, wfr(st,ct), ct, u, h, slot)
    def X(rt): return lambda e: xread_to(e, xfr(st,rt), rt, u, slot)
    if CUR["order"] == "r":
        seq = [("w",W(0,0)),("w",W(0,1)),("x",X(0)),("w",W(1,0)),("w",W(1,1)),("w",W(2,0)),("w",W(2,1)),
               ("w",W(3,0)),("w",W(3,1)),("x",X(1)),("x",X(2)),("x",X(3))]
    else:
        seq = [("w",W(0,0)),("w",W(0,1)),("x",X(0)),("x",X(1)),("x",X(2)),("x",X(3)),("w",W(1,0)),("w",W(1,1)),
               ("w",W(2,0)),("w",W(2,1)),("w",W(3,0)),("w",W(3,1))]
    return [f for k,f in seq if only is None or k == only]

def step(e, p, st, fills, first=False):
    for m,(rt,ct) in enumerate(ORDER[CUR['order']]):
        a = acc(rt,ct); w = wfr(st,ct); x = xfr(st,rt)
        if p.coarse and CUR['order'] == 'c' and m == 0:
            e.need(R(w,4)+R(xfr(st,0),16 if p.coarse == 1 else 8))
        if p.coarse == 2 and CUR['order'] == 'c' and m == 2:
            e.need(R(xfr(st,2),8))
        if not CUR.get('nowait'): e.need(R(w,4)+R(x,4))
        e.mfma(a, w, x, BIAS+ct*4 if first else a)
        for f in fills.get(m, []): f(e)

def spread(items, start, end, dbl=0):
    d = {}; g = start; i = 0
    while i < len(items):
        n = 2 if (g - start) < dbl else 1
        for k in range(n):
            if i < len(items): d.setdefault(min(g, end), []).append(items[i]); i += 1
        g += 1
    return d
def spread_even(items, start, end):
    d = {}; n = len(items); span = end - start + 1
    for i, it in enumerate(items):
        d.setdefault(start + (i * span) // n, []).append(it)
    return d
def merge(*ds):
    o = {}
    for d in ds:
        for k,v in d.items(): o.setdefault(k, []).extend(v)
    return o

def cdma_stage(p, m):
    if not p.cdma or p.dw != 3: return False
    n = m - 3; l, j = divmod(n, 16)
    return n >= 0 and 2 <= j <= 12

def gen_compute(e, p):
    e.label("L_compute")
    e(f"s_and_b32 s{S_B2}, s{S_WAVE}, 1\ns_lshr_b32 s{S_A}, s{S_WAVE}, 1")
    e(f"s_setprio {p.prio}")
    T=V_T
    e(f"v_and_b32 v{V_LANE}, 63, v0")
    e(f"v_and_b32 v{T}, 15, v{V_LANE}")
    e(f"v_lshrrev_b32 v{T+1}, 4, v{V_LANE}")
    e(f"v_lshrrev_b32 v{T+2}, 1, v{T}")
    e(f"v_xor_b32 v{T+3}, v{T+2}, v{T+1}\nv_lshlrev_b32 v{T+3}, 4, v{T+3}")
    e(f"v_lshlrev_b32 v{T+4}, 7, v{T}\nv_add_u32 v{T+3}, v{T+3}, v{T+4}")
    e(f"s_lshl_b32 s{S_T0}, s{S_A}, 13")
    e(f"v_add_u32 v{V_XA0}, s{S_T0}, v{T+3}\nv_xor_b32 v{V_XA1}, 64, v{V_XA0}")
    e(f"v_lshrrev_b32 v{T+3}, 1, v{T+1}\nv_xor_b32 v{T+3}, v{T+3}, v{T+2}\nv_lshlrev_b32 v{T+3}, 4, v{T+3}")
    e(f"v_add_u32 v{T+3}, v{T+3}, v{T+4}\nv_and_b32 v{T+4}, 1, v{T+1}\nv_lshlrev_b32 v{T+4}, 3, v{T+4}\nv_add_u32 v{T+3}, v{T+3}, v{T+4}")
    e(f"s_lshl_b32 s{S_T0+1}, s{S_B2}, 14\ns_add_u32 s{S_T0+1}, s{S_T0+1}, s{S_T0}")
    e(f"v_add_u32 v{V_LW}, s{S_T0+1}, v{T+3}")
    e(f"v_lshrrev_b32 v{T+2}, 2, v{T}\nv_lshlrev_b32 v{T+3}, 2, v{T+1}\nv_add_u32 v{T+2}, v{T+2}, v{T+3}")
    e(f"v_and_b32 v{T+3}, 7, v{T+2}")
    e(f"v_lshlrev_b32 v{T+2}, 8, v{T+2}\nv_and_b32 v{T+4}, 3, v{T}\nv_lshlrev_b32 v{T+4}, 3, v{T+4}\nv_add_u32 v{T+2}, v{T+2}, v{T+4}")
    e(f"v_add_u32 v{T+2}, {LDS_W}, v{T+2}")
    e(f"s_lshl_b32 s{S_T0+2}, s{S_B2}, 2")
    for ct in range(4):
        e(f"s_add_u32 s{S_T0+3}, s{S_T0+2}, {ct}\nv_xor_b32 v{T+4}, s{S_T0+3}, v{T+3}\nv_lshlrev_b32 v{T+4}, 5, v{T+4}\nv_add_u32 v{V_WA+ct}, v{T+2}, v{T+4}")
    e(f"v_lshlrev_b32 v{V_L16}, 4, v{V_LANE}")
    e(f"s_mov_b32 s{S_MASK}, 0xffff0000")
    e(f"s_lshl_b32 s{S_T0+3}, s{S_G}, 8\ns_lshl_b32 s{S_T0+4}, s{S_C}, 4\ns_add_u32 s{S_T0+3}, s{S_T0+3}, s{S_T0+4}")
    e(f"s_lshl_b32 s{S_T0+4}, s{S_WAVE}, 2\ns_add_u32 s{S_T0+3}, s{S_T0+3}, s{S_T0+4}\ns_add_u32 s{S_T0+3}, s{S_T0+3}, {WS_FLAG}")
    e(f"v_mov_b32 v{V_FO}, 0x7ffffff0\nv_mov_b32 v{T+4}, s{S_T0+3}\nv_cmp_eq_u32 vcc, 0, v{V_LANE}\ns_nop 1\nv_cndmask_b32 v{V_FO}, v{V_FO}, v{T+4}, vcc")
    e(f"s_mov_b32 s{S_FB}, {WS_FLAGB-WS_FLAG}")
    e(f"s_lshl_b32 s{S_STO}, s{S_G}, 18\ns_lshl_b32 s{S_T0+3}, s{S_C}, 15\ns_add_u32 s{S_STO}, s{S_STO}, s{S_T0+3}\ns_add_u32 s{S_STO}, s{S_STO}, s{S_T0+1}")
    e(f"s_add_u32 s{S_STO2}, s{S_STO}, 4096")
    e("s_waitcnt lgkmcnt(0)"); srd(e, SRD_WS, 40, WS_SIZE); srd(e, SRD_O, 42, 8<<20)
    if p.cpf:
        srd(e, SRD_W, 6, 6<<20)
        e(f"s_lshl_b32 s{S_PFC}, s2, 13\ns_lshl_b32 s{S_T0}, s{S_WAVE}, 11\ns_add_u32 s{S_PFC}, s{S_PFC}, s{S_T0}")
    if p.cdma:
        srd(e, SRD_W, 6, 6<<20)
        e(f"s_lshl_b32 s{S_LX}, s{S_WAVE}, 12\ns_add_u32 s{S_LX}, s{S_LX}, {LDS_W + 3072}")
        e(f"s_lshr_b32 s{S_T0}, s{S_WAVE}, 1\ns_lshl_b32 s{S_T0}, s{S_T0}, 5\ns_and_b32 s{S_T0+3}, s{S_WAVE}, 1\ns_lshl_b32 s{S_T0+3}, s{S_T0+3}, 2\ns_add_u32 s{S_T0}, s{S_T0}, s{S_T0+3}")
        e(f"s_lshl_b32 s{S_WB0}, s{S_T0}, 11\ns_lshl_b32 s{S_T0+3}, s{S_C}, 8\ns_add_u32 s{S_WB0}, s{S_WB0}, s{S_T0+3}")
        e(f"s_lshl_b32 s{S_WB1}, s{S_WAVE}, 15\ns_add_u32 s{S_WB1}, s{S_WB1}, s{S_T0+3}")
        e(f"s_lshr_b32 s{S_T0}, s{S_G}, 3\ns_lshl_b32 s{S_T0}, s{S_T0}, 2\ns_lshr_b32 s{S_OFF}, {sum(o << (4*i) for i,o in enumerate(p.moff))}, s{S_T0}\ns_and_b32 s{S_OFF}, s{S_OFF}, 15")
        e(f"s_mov_b32 s{S_TAB}, 0\ns_mov_b32 s{S_TAB+1}, 0")
        for j in range(16):
            if j < 2 or not p.mrot:
                e(f"s_lshl_b32 s{S_KC}, s{S_C}, 1\ns_add_u32 s{S_KC}, s{S_KC}, {j}\ns_and_b32 s{S_KC}, s{S_KC}, 15")
            else:
                e(f"s_add_u32 s{S_KC}, s{S_OFF}, {j-2}\ns_cmp_ge_u32 s{S_KC}, 14\ns_cselect_b32 s{S_T0+5}, 14, 0\ns_sub_u32 s{S_KC}, s{S_KC}, s{S_T0+5}")
                e(f"s_lshl_b32 s{S_T0+5}, s{S_C}, 1\ns_add_u32 s{S_KC}, s{S_KC}, s{S_T0+5}\ns_add_u32 s{S_KC}, s{S_KC}, 2\ns_and_b32 s{S_KC}, s{S_KC}, 15")
            e(f"s_lshl_b32 s{S_KC}, s{S_KC}, {4*(j%8)}\ns_or_b32 s{S_TAB+j//8}, s{S_TAB+j//8}, s{S_KC}")
    e(f"s_lshl_b32 s{S_T0}, s{S_G}, 7\ns_add_u32 s{S_T0}, s{S_T0}, {WS_V}")
    e(f"s_load_dword s{S_TAG}, s[40:41], s{S_T0}")
    e(f"s_getreg_b32 s{S_XT}, hwreg(HW_REG_XCC_ID, 0, 4)")
    e("s_waitcnt lgkmcnt(0)")
    e(f"s_add_u32 s{S_XT}, s{S_XT}, s{S_TAG}\ns_add_u32 s{S_XT}, s{S_XT}, {TAGX}")
    e(f"s_add_u32 s{S_TAG}, s{S_TAG}, {TAGK}\nv_mov_b32 v{V_FD}, s{S_TAG}")
    use_xc = p.force_fast is None
    def op_xc(e):
        e(f"s_lshl_b32 s{S_T0}, s{S_G}, 7\ns_lshl_b32 s{S_T0+1}, s{S_C}, 2\ns_add_u32 s{S_T0}, s{S_T0}, s{S_T0+1}\ns_add_u32 s{S_T0}, s{S_T0}, {WS_XC}")
        e(f"v_mov_b32 v{T+2}, 0x7ffffff0\nv_mov_b32 v{T+3}, s{S_T0}\nv_cmp_eq_u32 vcc, 0, v{V_LANE}\ns_nop 1\nv_cndmask_b32 v{T+2}, v{T+2}, v{T+3}, vcc\nv_mov_b32 v{T+3}, s{S_XT}")
        e(f"buffer_store_dword v{T+3}, v{T+2}, s[{SRD_WS}:{SRD_WS+3}], 0 offen sc1")
    if not use_xc: e(f"s_mov_b32 s{S_FAST}, {int(p.force_fast)}")
    def op_touch(e):
        e(f"s_lshl_b32 s{S_T0}, s{S_G}, 8\ns_add_u32 s{S_T0}, s{S_T0}, {WS_FLAG}\nv_lshlrev_b32 v{T+2}, 2, v{V_LANE}")
        e(f"s_mov_b32 m0, {LDS_DUMMY}\ns_nop 0")
        e(f"buffer_load_dword v{T+2}, s[{SRD_WS}:{SRD_WS+3}], s{S_T0} offen sc1 lds")

    def bias_reads(l):
        def f0(e):
            e(f"v_lshrrev_b32 v{T}, 4, v{V_LANE}\nv_lshlrev_b32 v{T}, 3, v{T}\ns_lshl_b32 s{S_T0}, s{S_B2}, 7\ns_add_u32 s{S_T0}, s{S_T0}, {LDS_B}\nv_add_u32 v{T}, s{S_T0}, v{T}")
        out=[f0]
        for ct in range(4):
            r = BIAS+ct*4+2
            out.append(lambda e, ct=ct, r=r: e.lds_op(f"ds_read_b64 {vr(r,2)}, v{T} offset:{l*256 + ct*32}", R(r,2)))
        return out
    def bias_unpack():
        out=[]
        for ct in range(4):
            b = BIAS+ct*4
            def f(e, b=b):
                e.need(R(b+2,2))
                e(f"v_lshlrev_b32 v{b}, 16, v{b+2}\nv_and_b32 v{b+1}, s{S_MASK}, v{b+2}")
                e(f"v_lshlrev_b32 v{b+2}, 16, v{b+3}\nv_and_b32 v{b+3}, s{S_MASK}, v{b+3}")
            out.append(f)
        return out

    if p.stamps: e("v_mov_b32 v15, 0\nv_writelane_b32 v15, s66, 0\nv_writelane_b32 v15, s68, 32")
    stamp(e,p,1)
    e("s_barrier")
    enc_point(e, p, "bfirst")
    stamp(e,p,2)
    for f in bias_reads(0): f(e)
    for f in frag_reads(0,0,0): f(e)
    for f in bias_unpack(): f(e)
    for k in range(16): e(f"v_add_f32 v{BIAS+k}, 1.0, v{BIAS+k}")
    e("s_nop 1")
    unpack_q = []
    order = ORDER[CUR['order']]
    def place_adds(q, gaps):
        d = {}
        for g in gaps:
            for i,(m,f) in enumerate(q):
                if 8 <= (g - m) % 16 <= 13:
                    d.setdefault(g, []).append(f); q.pop(i); break
        return d

    XBUF = [RES, RES+12]; TMP = RES+24
    def WP(ct, s): return (FR+32 if ct < 2 else FR) + ((ct % 2)*3 + (s-1))*4
    def XP(buf, s): return XBUF[buf] + (s-1)*4
    SU = {1:(2,1), 2:(3,0), 3:(3,1)}
    def wr_(ct, s, h): return lambda e: wread_to(e, WP(ct,s), ct, SU[s][1], h, SU[s][0])
    def xr_(buf, rt, s): return lambda e: xread_to(e, XP(buf,s), rt, SU[s][1], SU[s][0])

    def block_epilogue(l, bi, rt, t):
        P4 = BIAS + 4*(bi % 4)
        items = []
        for c2 in range(2):
            ct = 2*t + c2
            if p.prog_pk:
                for h in range(2):
                    def mul(e, ct=ct, h=h, c2=c2):
                        e.after_mfma([acc(rt,ct)+2*h, acc(rt,ct)+2*h+1])
                        e(f"v_pk_mul_f32 {vr(TMP+4*c2+2*h,2)}, {vr(x0f(rt,ct)+2*h,2)}, {vr(acc(rt,ct)+2*h,2)}")
                    items.append(mul)
            else:
                for r in range(4):
                    def mul(e, ct=ct, r=r, c2=c2):
                        e.after_mfma([acc(rt,ct)+r])
                        e(f"v_mul_f32 v{TMP+4*c2+r}, v{x0f(rt,ct)+r}, v{acc(rt,ct)+r}")
                    items.append(mul)
        cv = [lambda e, d=d: e(f"v_cvt_pk_bf16_f32 v{P4+d}, v{TMP+2*d}, v{TMP+2*d+1}") for d in range(4)]
        hn = len(items)//2
        seq = items[0:hn] + [cv[0], cv[1]] + items[hn:] + [cv[2], cv[3]]
        if l < 2:
            so = S_STO if rt < 2 else S_STO2
            if not p.nostore:
                sd = SRD_O if (l == 0 and p.x1_in_out) else SRD_WS
                seq.append(lambda e: e(f"buffer_store_dwordx4 {vr(P4,4)}, v{V_L16}, s[{sd}:{sd+3}], s{so} offen offset:{(rt%2)*2048+t*1024} {p.st_flags}"))
            seq.append(lambda e: e.lds_op(f"ds_write_b128 v{V_LW}, {vr(P4,4)} offset:{rt*2048+t*1024}"))
            return seq, []
        bo = (bi % 2)*1024; RB = T + 0 if False else None
        RD = FR + 56 + 4*(bi % 2)
        seq.append(lambda e: e.lds_op(f"ds_write_b64 v{V_LW}, {vr(P4,2)} offset:{bo}"))
        seq.append(lambda e: e.lds_op(f"ds_write_b64 v{V_T}, {vr(P4+2,2)} offset:{bo}"))
        seq.append(lambda e: e.lds_op(f"ds_read_b128 {vr(RD,4)}, v{V_FO} offset:{bo}", R(RD,4)))
        def st(e):
            e.need(R(RD,4))
            e(f"s_add_u32 s{S_T0}, s{S_STO}, {rt*16*2048 + t*64}")
            e(f"buffer_store_dwordx4 {vr(RD,4)}, v{V_FD}, s[{SRD_O}:{SRD_O+3}], s{S_T0} offen {p.out_flags}")
        return seq, [st]

    def progressive_end(l):
        pre = [wr_(0,1,0), wr_(0,1,1), xr_(0,0,1), wr_(1,1,0), wr_(1,1,1)]
        post = [wr_(0,2,0), wr_(0,2,1), xr_(0,0,2), wr_(0,3,0), wr_(0,3,1), xr_(0,0,3), wr_(1,2,0), wr_(1,2,1), wr_(1,3,0), wr_(1,3,1)]
        fills = merge(spread(pre, 0, 15), {p.b15_gap: [lambda e: e("s_barrier")]}, spread(post, p.b15_gap+1 if p.b15_gap >= 4 else 5, 15))
        step(e, p, 0, fills)
        blocks = [(rt,0) for rt in range(4)] + [(rt,1) for rt in range(4)]
        wb = [wr_(ct,s,h) for ct in (2,3) for s in (1,2,3) for h in range(2)]
        pend = []; late = []
        for bi,(rt,t) in enumerate(blocks):
            buf = bi % 2
            reads = []
            if bi + 1 < len(blocks): reads += [xr_(1-buf, blocks[bi+1][0], s) for s in (1,2,3)]
            if t == 0: reads += wb[3*rt:3*rt+3]
            work = pend + late
            late = []
            nw = len(work); k = 0
            seq = [(ct,s) for ct in (2*t, 2*t+1) for s in (1,2,3)]
            for m,(ct,s) in enumerate(seq):
                a = acc(rt,ct)
                e.need(R(WP(ct,s),4)+R(XP(buf,s),4))
                e.mfma(a, WP(ct,s), XP(buf,s), a)
                if m < len(reads): reads[m](e)
                if bi == 4 and m == 5 and l < 2: e("s_barrier")
                take = (nw*(m+1))//6 - (nw*m)//6 if m >= 0 else 0
                for _ in range(take): work[k](e); k += 1
            assert k == nw
            pend, st = block_epilogue(l, bi, rt, t)
            if l == 2:
                pend = pend; late_next = st
                pend = pend + []
                late = []
                blocks_late.append(late_next)
                if len(blocks_late) >= 2: late = blocks_late.pop(0)
        stamp(e,p,3+3*l)
        for f in pend: f(e)
        for f in late: f(e)
        while blocks_late:
            for f in blocks_late.pop(0): f(e)

    def classic_end(l):
        stamp(e,p,3+3*l)
        enc_point(e, p, f"k{l}")
        TE = FR + 32
        e.after_mfma(R(ACC, 64))
        def body(flav):
            for rt in range(4):
                for t in range(2):
                    prs = []
                    for d in range(4):
                        ct = 2*t + d//2; dd = d % 2
                        k = (rt*2+t)*4+d
                        prs.append((TE + 2*(k % 16), res(rt,ct)+dd, acc(rt,ct)+2*dd, x0f(rt,ct)+2*dd))
                    for tm,r,a_,x in prs: e(f"v_pk_mul_f32 {vr(tm,2)}, {vr(x,2)}, {vr(a_,2)}")
                    for tm,r,a_,x in prs: e(f"v_cvt_pk_bf16_f32 v{r}, v{tm}, v{tm+1}")
                    r = res(rt,2*t)
                    so = S_STO if rt < 2 else S_STO2
                    sd = SRD_O if (l == 0 and p.x1_in_out) else SRD_WS
                    if not p.nostore: e(f"buffer_store_dwordx4 {vr(r,4)}, v{V_L16}, s[{sd}:{sd+3}], s{so} offen offset:{(rt%2)*2048+t*1024} {flav}")
                    k8 = rt*2 + t
                    if k8 >= p.dsw_lag:
                        kk = k8 - p.dsw_lag
                        e.lds_op(f"ds_write_b128 v{V_LW}, {vr(res(kk//2, 2*(kk%2)),4)} offset:{(kk//2)*2048+(kk%2)*1024}")
            for kk in range(max(8 - p.dsw_lag, 0), 8):
                e.lds_op(f"ds_write_b128 v{V_LW}, {vr(res(kk//2, 2*(kk%2)),4)} offset:{(kk//2)*2048+(kk%2)*1024}")
        if l in p.x_slow or p.force_fast is False:
            body("sc1")
        elif p.force_fast is True:
            body("")
        else:
            saved = list(e.lds)
            e(f"s_cmp_eq_u32 s{S_FAST}, 0\ns_cbranch_scc1 L_slow{l}")
            body("")
            e(f"s_branch L_join{l}")
            after = list(e.lds); e.lds = saved
            e.label(f"L_slow{l}")
            body("sc1")
            assert len(e.lds) == len(after)
            e.label(f"L_join{l}")

    for l in range(3):
        add_q = []
        blocks_late = []
        prog = l in p.prog_layers
        nj = 14 if prog else 16
        for j in range(nj):
            if p.exp_loop and l == 1:
                if j == 2:
                    e("s_mov_b32 s91, 3"); e.label("L_exploop")
                if 6 <= j <= 13:
                    if j == 6: e("s_sub_u32 s91, s91, 1\ns_cmp_lg_u32 s91, 0\ns_cbranch_scc1 L_exploop")
                    continue
            n = 16*l + j; slot = n % 4
            CUR['nowait'] = bool(p.exp_nowait) and l == 1 and 2 <= j <= 13
            CUR['b128'] = p.exp_b128 and l == 1 and 2 <= j <= 12
            fills = spread(frag_reads(1,1,slot), 0, 15, dbl=p.dbl0) if p.span0 is None else spread_even(frag_reads(1,1,slot), 0, p.span0)
            extra = {}
            if l == 0 and j == 0: extra = merge(extra, {4:[op_xc], 10:[op_touch]} if use_xc else {6:[op_touch]})
            if p.tlbw is not None and l == 0 and j == p.tlbw:
                def tw(e, sd, add):
                    e(f"s_add_u32 s{S_T0}, s{S_STO}, {add}\ns_mov_b32 m0, {LDS_DUMMY}")
                    e(f"v_and_b32 v{T+2}, 0, v{V_LANE}")
                    e(f"buffer_load_dword v{T+2}, s[{sd}:{sd+3}], s{S_T0} offen sc1 lds")
                extra = merge(extra, {6:[lambda e: tw(e, SRD_O if p.x1_in_out else SRD_WS, 0)], 12:[lambda e: tw(e, SRD_WS, WS_X2)]})
            if use_xc and l == 0 and j == 6:
                def xc_load(e):
                    e(f"v_and_b32 v{T}, 7, v{V_LANE}\nv_lshlrev_b32 v{T}, 2, v{T}\ns_lshl_b32 s{S_T0}, s{S_G}, 7\ns_add_u32 s{S_T0}, s{S_T0}, {WS_XC}")
                    e.vm_op(f"buffer_load_dword v{T+1}, v{T}, s[{SRD_WS}:{SRD_WS+3}], s{S_T0} offen sc1", ("xc",0))
                extra = merge(extra, {13:[xc_load]})
            if use_xc and l == 0 and j == 8:
                def xc_test(e):
                    e.vm_need([("xc",0)])
                    e(f"v_cmp_eq_u32 vcc, s{S_XT}, v{T+1}")
                    e("s_nop 1")
                    e(f"s_cmp_eq_u64 vcc, -1\ns_cselect_b32 s{S_FAST}, 1, 0")
                extra = merge(extra, {13:[xc_test]})
            if l == 0 and j == 1:
                items = []
                for ct in range(4):
                    items.append(lambda e, ct=ct: e(f"v_xor_b32 v{T+ct}, {ct*32}, v{V_LW}"))
                for rt in range(4):
                    for ct in range(4):
                        r = res(rt,ct)
                        items.append(lambda e, rt=rt, ct=ct, r=r: e.lds_op(f"ds_read_b64 {vr(r,2)}, v{T+ct} offset:{rt*2048}", R(r,2)))
                k=0
                for g in range(16):
                    extra[g] = items[k:k+2] if g < 4 else items[k:k+1]
                    k += len(extra[g])
                assert k == len(items)
                for rt in range(4):
                    for ct in range(4):
                        for d in range(2):
                            def f(e, rt=rt, ct=ct, d=d):
                                r = res(rt,ct)+d; x = x0f(rt,ct)+2*d
                                e.need([r])
                                e(f"v_lshlrev_b32 v{x}, 16, v{r}\nv_and_b32 v{x+1}, s{S_MASK}, v{r}")
                            unpack_q.append(f)
            if l > 0 and j == 0 and not p.pub_pre:
                def pub(e, l=l):
                    e("s_waitcnt vmcnt(0)"); e.vm = []
                    stamp(e, p, 10+l)
                    e(f"buffer_store_dword v{V_FD}, v{V_FO}, s[{SRD_WS}:{SRD_WS+3}], 0 offen offset:{(l-1)*128}")
                    e(f"buffer_store_dword v{V_FD}, v{V_FO}, s[{SRD_WS}:{SRD_WS+3}], s{S_FB} offen offset:{(l-1)*128} sc1")
                extra = merge(extra, {p.pub_gap: [pub]})
            if l > 0 and not (p.exp_loop and l == 1):
                if j == 2:
                    br = bias_reads(l)
                    extra = merge(extra, {11:[br[0]], 12:[br[1], br[2]], 13:[br[3], br[4]]})
                if j == 3:
                    bu = bias_unpack()
                    extra = merge(extra, {12+i:[f] for i,f in enumerate(bu)})
                    for r in range(4):
                        for m,(rt,ct) in enumerate(order):
                            add_q.append((m, lambda e, rt=rt, ct=ct, r=r: e(f"v_add_f32 v{acc(rt,ct)+r}, v{BIAS+ct*4+r}, v{acc(rt,ct)+r}")))
                elif j >= 4 and add_q:
                    extra = merge(extra, place_adds(add_q, [12,12,13,13,14,14,15,15]))
            if l == 0 and j >= 3 and unpack_q:
                items = unpack_q[:4]; unpack_q = unpack_q[4:]
                extra = merge(extra, {12+i:[it] for i,it in enumerate(items)})
            if j == 12:
                def addr_end(e, l=l):
                    if l == 0:
                        e(f"s_lshl_b32 s{S_T0}, s{S_A}, 13\ns_lshl_b32 s{S_T0+1}, s{S_B2}, 14\ns_add_u32 s{S_T0+1}, s{S_T0+1}, s{S_T0}\nv_add_u32 v{V_LW}, s{S_T0+1}, v{V_L16}")
                    if l == 2:
                        e(f"v_and_b32 v{TMP}, 15, v{V_LANE}\nv_lshrrev_b32 v{TMP+1}, 4, v{V_LANE}")
                        e(f"v_bfe_u32 v{TMP+2}, v{TMP}, 1, 2\nv_lshrrev_b32 v{TMP+3}, 1, v{TMP+1}\nv_xor_b32 v{TMP+2}, v{TMP+2}, v{TMP+3}\nv_lshlrev_b32 v{TMP+2}, 4, v{TMP+2}")
                        e(f"v_and_b32 v{TMP+3}, 1, v{TMP+1}\nv_lshlrev_b32 v{TMP+3}, 3, v{TMP+3}\nv_add_u32 v{TMP+2}, v{TMP+2}, v{TMP+3}")
                        e(f"v_lshlrev_b32 v{TMP+3}, 6, v{TMP}\nv_add_u32 v{TMP+2}, v{TMP+2}, v{TMP+3}\ns_lshl_b32 s{S_T0}, s{S_WAVE}, 11")
                        e(f"v_add_u32 v{V_LW}, s{S_T0}, v{TMP+2}\nv_xor_b32 v{V_T}, 32, v{V_LW}")
                        e(f"v_lshrrev_b32 v{TMP}, 2, v{V_LANE}\nv_and_b32 v{TMP+1}, 3, v{V_LANE}\nv_bfe_u32 v{TMP+2}, v{TMP}, 1, 2\nv_xor_b32 v{TMP+2}, v{TMP+2}, v{TMP+1}")
                        e(f"v_lshlrev_b32 v{TMP+2}, 4, v{TMP+2}\nv_lshlrev_b32 v{TMP+3}, 6, v{TMP}\nv_add_u32 v{TMP+2}, v{TMP+2}, v{TMP+3}\nv_add_u32 v{V_FO}, s{S_T0}, v{TMP+2}")
                        e(f"v_lshlrev_b32 v{TMP+2}, 11, v{TMP}\nv_lshlrev_b32 v{TMP+3}, 4, v{TMP+1}\nv_add_u32 v{V_FD}, v{TMP+2}, v{TMP+3}")
                        e(f"s_lshl_b32 s{S_STO}, s{S_G}, 18\ns_lshl_b32 s{S_T0}, s{S_A}, 17\ns_add_u32 s{S_STO}, s{S_STO}, s{S_T0}")
                        e(f"s_lshl_b32 s{S_T0}, s{S_C}, 8\ns_add_u32 s{S_STO}, s{S_STO}, s{S_T0}\ns_lshl_b32 s{S_T0}, s{S_B2}, 7\ns_add_u32 s{S_STO}, s{S_STO}, s{S_T0}")
                extra = merge(extra, {12:[addr_end]})
            step(e, p, 0, merge(fills, extra), first=(l == 0 and j == 0))
            fills = {}
            barrier = not (l > 0 and j == 0) and n != 47
            start = 0
            if p.cdma and j == 1 and l < 2:
                def cd_addr(e, l=l):
                    TT = TMP if l > 0 else FR
                    e(f"v_lshrrev_b32 v{T+1}, 4, v{V_LANE}\nv_bfe_u32 v{T+2}, v{V_LANE}, 1, 3\nv_xor_b32 v{T+2}, v{T+2}, v{T+1}\nv_lshlrev_b32 v{T+2}, 5, v{T+2}")
                    e(f"v_and_b32 v{T+3}, 1, v{V_LANE}\nv_lshlrev_b32 v{T+3}, 4, v{T+3}\nv_add_u32 v{T+2}, v{T+2}, v{T+3}\nv_lshlrev_b32 v{T+1}, 11, v{T+1}\nv_add_u32 v{T+2}, v{T+2}, v{T+1}")
                    e(f"v_xor_b32 v{T+2}, 128, v{T+2}\nv_add_u32 v{T+3}, {(24 if l == 0 else 12)*2048}, v{T+2}")
                fills = merge(fills, {8:[cd_addr]})
            seen = {}
            for (pl, pn, pg) in p.cpf:
                if pn == n:
                    k = seen.get(pl, sum(1 for q in p.cpf[:p.cpf.index((pl,pn,pg))] if q[0] == pl)); seen[pl] = k + 1
                    def pf(e, pl=pl, k=k):
                        e(f"s_add_u32 s{S_T0}, s{S_PFC}, {pl*(2<<20) + k*1024}\ns_mov_b32 m0, {LDS_DUMMY}")
                        e("s_nop 0")
                        e(f"buffer_load_dwordx4 v{V_L16}, s[{SRD_W}:{SRD_W+3}], s{S_T0} offen lds")
                    fills = merge(fills, {pg:[pf]})
            if barrier and cdma_stage(p, n+3):
                m = n + 3; lm, jm = divmod(m, 16)
                def cd_prep(e, m=m, lm=lm, jm=jm):
                    e(f"s_bfe_u32 s{S_KC}, s{S_TAB+jm//8}, {(4 << 16) | (4*(jm%8))}\ns_lshl_b32 s{S_SW}, s{S_KC}, 17")
                    e(f"s_add_u32 s{S_SW}, s{S_SW}, s{S_WB0 if lm == 0 else S_WB1}")
                    if lm > 0: e(f"s_add_u32 s{S_SW}, s{S_SW}, {lm*(2<<20)}")
                    e(f"s_add_u32 m0, s{S_LX}, {(m % 4)*16384}")
                def cd_issue(e, m=m):
                    e.vm_op(f"buffer_load_dwordx4 v{T+3}, s[{SRD_W}:{SRD_W+3}], s{S_SW} offen lds", ("cw", m))
                fills = merge(fills, {0:[cd_prep], p.cd_gap:[cd_issue]})
            if barrier:
                def bar(e, n=n):
                    e.vm_need([("cw", n+1)])
                    if CUR.get('nowait') and p.exp_nowait == 2: e.lds = []
                    e.lds_all()
                    if n in p.barw: e("s_memtime s[92:93]")
                    e("s_barrier")
                    if n in p.barw:
                        e(f"s_memtime s[94:95]\ns_waitcnt lgkmcnt(0)\ns_sub_u32 s94, s94, s92\nv_writelane_b32 v15, s94, {16+p.barw.index(n)}")
                    if n in (17, 33): stamp(e, p, 5 + 3*(n//16 - 1))
                    enc_point(e, p, f"mid{n}")
                fills = merge(fills, {p.bar_gap: [bar]})
                start = p.bar_gap + 1
            if j < 15:
                if p.span0 is None: fills = merge(fills, spread(frag_reads(0,0,(n+1)%4), start, 15, dbl=p.dbl if barrier else 0))
                else: fills = merge(fills, spread_even(frag_reads(0,0,(n+1)%4), start, 15 if barrier else p.span0))
            elif l < 2:
                fills = merge(fills, spread(frag_reads(0,0,(n+1)%4, only="w"), start, 15, dbl=2))
            if l > 0 and j >= 4 and add_q:
                fills = merge(fills, place_adds(add_q, [0,1,2,5,6,7]))
            if l == 0 and j >= 3 and unpack_q:
                items = unpack_q[:2]; unpack_q = unpack_q[2:]
                fills = merge(fills, {i:[it] for i,it in enumerate(items)})
            step(e, p, 1, fills)
        assert not unpack_q and not add_q, (len(unpack_q), len(add_q))
        if prog: progressive_end(l)
        else: classic_end(l)
        assert prog or l < 2
        if l < 2:
            e(f"s_add_u32 s{S_STO}, s{S_STO}, {WS_X2-WS_X1}\ns_add_u32 s{S_STO2}, s{S_STO2}, {WS_X2-WS_X1}")
            if l == 0:
                e(f"s_lshl_b32 s{S_T0}, s{S_A}, 13\nv_add_u32 v{V_XA0}, s{S_T0}, v{V_L16}\nv_add_u32 v{V_XA1}, 1024, v{V_XA0}")
            if p.pub_pre:
                e("s_waitcnt vmcnt(0)")
                stamp(e, p, 11+l)
                e(f"buffer_store_dword v{V_FD}, v{V_FO}, s[{SRD_WS}:{SRD_WS+3}], 0 offen offset:{l*128}")
                e(f"buffer_store_dword v{V_FD}, v{V_FO}, s[{SRD_WS}:{SRD_WS+3}], s{S_FB} offen offset:{l*128} sc1")
            e.lds_all()
            stamp(e,p,4+3*l)
            e("s_barrier")
            for f in frag_reads(0,0,0, only=None if prog else "x"): f(e)
            e("s_nop 1")
        else:
            stamp(e,p,4+3*l)
    if p.stamps:
        e("s_waitcnt vmcnt(0)")
        stamp(e,p,15)
        e("v_mov_b32 v60, v15")
        stamp_out(e,p,60)
    if p.enc:
        what, M, wg = p.enc
        if wg != "all": e(f"s_cmp_eq_u32 s2, {wg}\ns_cbranch_scc0 L_encd")
        e(f"s_cmp_eq_u32 s{S_WAVE}, 0\ns_cbranch_scc0 L_encd")
        e("s_waitcnt vmcnt(0)\ns_memrealtime s[64:65]\ns_waitcnt lgkmcnt(0)")
        if what == "end": e("s_mov_b32 s66, s64")
        e(f"s_sub_u32 s66, s66, s68\ns_mul_i32 s66, s66, {M}")
        e.label("L_encs")
        e("s_memrealtime s[62:63]\ns_waitcnt lgkmcnt(0)\ns_sub_u32 s62, s62, s64\ns_cmp_lt_u32 s62, s66\ns_cbranch_scc1 L_encs")
        e.label("L_encd")
    e("s_endpgm")

def gen_loader(e, p):
    e.label("L_loader")
    e.lds = []; e.vm = []
    XV0=1; XV1=5; WV0=6; WV1=10; T=14
    e(f"s_sub_u32 s{S_A}, s{S_WAVE}, 4")
    e("v_and_b32 v0, 63, v0")
    e(f"v_lshrrev_b32 v{T}, 3, v0\nv_and_b32 v{T+1}, 7, v0\nv_lshrrev_b32 v{T+2}, 4, v0")
    e(f"v_xor_b32 v{T+3}, v{T+1}, v{T+2}\nv_lshlrev_b32 v{T+3}, 4, v{T+3}\nv_lshlrev_b32 v{T+4}, 11, v{T}\nv_add_u32 v{XV0}, v{T+3}, v{T+4}")
    e(f"v_xor_b32 v{T+3}, 64, v{XV0}")
    e(f"v_add_u32 v{XV0+1}, {8*2048-1024}, v{T+3}\nv_add_u32 v{XV0+2}, {16*2048-2048}, v{XV0}\nv_add_u32 v{XV0+3}, {24*2048-3072}, v{T+3}")
    e(f"v_bfe_u32 v{T+3}, v0, 1, 3\nv_xor_b32 v{T+3}, v{T+3}, v{T+2}\nv_lshlrev_b32 v{T+3}, 5, v{T+3}")
    e(f"v_and_b32 v{T+4}, 1, v0\nv_lshlrev_b32 v{T+4}, 4, v{T+4}\nv_add_u32 v{T+3}, v{T+3}, v{T+4}")
    e(f"v_lshlrev_b32 v{T+4}, 11, v{T+2}\nv_add_u32 v{WV0}, v{T+3}, v{T+4}")
    e(f"v_xor_b32 v{T+3}, 128, v{WV0}")
    e(f"v_add_u32 v{WV0+1}, {8*2048-1024}, v{T+3}\nv_add_u32 v{WV0+2}, {16*2048-2048}, v{WV0}\nv_add_u32 v{WV0+3}, {24*2048-3072}, v{T+3}")
    e(f"s_lshl_b32 s{S_XB0}, s{S_G}, 18\ns_lshl_b32 s{S_T0}, s{S_A}, 16\ns_add_u32 s{S_XB0}, s{S_XB0}, s{S_T0}")
    e(f"s_lshl_b32 s{S_LX}, s{S_A}, 12")
    e(f"s_lshr_b32 s{S_T0}, s{S_A}, 1\ns_lshl_b32 s{S_T0}, s{S_T0}, 5\ns_and_b32 s{S_T0+1}, s{S_A}, 1\ns_lshl_b32 s{S_T0+1}, s{S_T0+1}, 2\ns_add_u32 s{S_T0}, s{S_T0}, s{S_T0+1}")
    e(f"s_lshl_b32 s{S_WB0}, s{S_T0}, 11\ns_lshl_b32 s{S_T0+1}, s{S_C}, 8\ns_add_u32 s{S_WB0}, s{S_WB0}, s{S_T0+1}")
    tab_ready = [False]
    def kc_slow(j):
        if j < 2 or not p.mrot:
            e(f"s_lshl_b32 s{S_KC}, s{S_C}, 1\ns_add_u32 s{S_KC}, s{S_KC}, {j}\ns_and_b32 s{S_KC}, s{S_KC}, 15")
        else:
            e(f"s_add_u32 s{S_KC}, s{S_OFF}, {j-2}\ns_cmp_ge_u32 s{S_KC}, 14\ns_cselect_b32 s{S_T0+5}, 14, 0\ns_sub_u32 s{S_KC}, s{S_KC}, s{S_T0+5}")
            e(f"s_lshl_b32 s{S_T0+5}, s{S_C}, 1\ns_add_u32 s{S_KC}, s{S_KC}, s{S_T0+5}\ns_add_u32 s{S_KC}, s{S_KC}, 2\ns_and_b32 s{S_KC}, s{S_KC}, 15")
    def build_tab():
        e(f"s_mov_b32 s{S_TAB}, 0\ns_mov_b32 s{S_TAB+1}, 0")
        for j in range(16):
            kc_slow(j)
            e(f"s_lshl_b32 s{S_KC}, s{S_KC}, {4*(j%8)}\ns_or_b32 s{S_TAB+j//8}, s{S_TAB+j//8}, s{S_KC}")
        tab_ready[0] = True
    def kc(j):
        if tab_ready[0]: e(f"s_bfe_u32 s{S_KC}, s{S_TAB+j//8}, {(4 << 16) | (4*(j%8))}")
        else: kc_slow(j)
    def need_mask(dst):
        e(f"s_lshr_b32 s{dst}, s{S_KC}, 1\ns_lshl_b32 s{dst}, s{dst}, 2\ns_and_b32 s{S_T0+5}, s{S_KC}, 1\ns_add_u32 s{dst}, s{dst}, s{S_T0+5}")
        e(f"s_lshl_b32 s{dst}, 5, s{dst}")
    def ensure(n, also=None):
        l = n // 16
        if p.nosync:
            kc(n % 16); return
        if also is None:
            e(f"s_cmp_eq_u32 s{S_RDY}, -1\ns_cbranch_scc1 L_ok{n}")
        if also is not None:
            kc(also % 16); need_mask(S_NEED2)
        kc(n % 16); need_mask(S_NEED)
        if also is not None: e(f"s_or_b32 s{S_NEED}, s{S_NEED}, s{S_NEED2}")
        e(f"s_and_b32 s{S_T0+5}, s{S_RDY}, s{S_NEED}\ns_cmp_eq_u32 s{S_T0+5}, s{S_NEED}\ns_cbranch_scc1 L_ok{n}")
        e(f"s_mov_b32 s{S_CNT}, 0")
        e.label(f"L_poll{n}")
        e(f"s_cmp_ge_u32 s{S_CNT}, {p.a_only}\ns_cselect_b32 s{S_T0+5}, 1, 0\ns_and_b32 s{S_T0+5}, s{S_T0+5}, s{S_CNT}\ns_mul_i32 s{S_PO}, s{S_T0+5}, {WS_FLAGB-WS_FLAG}")
        e(f"buffer_load_dword v{T+2}, v{T+1}, s[{SRD_WS}:{SRD_WS+3}], s{S_PO} offen offset:{(l-1)*128} sc1")
        e("s_waitcnt vmcnt(0)")
        e(f"v_cmp_eq_u32 vcc, s{S_TAG}, v{T+2}")
        e("s_nop 1")
        e(f"s_or_b32 s{S_RDY}, s{S_RDY}, vcc_lo")
        e(f"s_and_b32 s{S_T0+5}, s{S_RDY}, s{S_NEED}\ns_cmp_eq_u32 s{S_T0+5}, s{S_NEED}\ns_cbranch_scc1 L_ok{n}")
        e(f"s_add_u32 s{S_CNT}, s{S_CNT}, 1\ns_cmp_lg_u32 s{S_CNT}, {p.poll_max}")
        e(f"s_cbranch_scc1 L_poll{n}")
        e.label(f"L_ok{n}")
    def poll_async(l, tag):
        if p.nosync: return
        e.vm_op(f"buffer_load_dword v{T+5}, v{T+1}, s[{SRD_WS}:{SRD_WS+3}], 0 offen offset:{(l-1)*128} sc1", tag)
    def poll_collect(tag):
        if p.nosync: return
        e.vm_need([tag])
        e(f"v_cmp_eq_u32 vcc, s{S_TAG}, v{T+5}")
        e("s_nop 1")
        e(f"s_or_b32 s{S_RDY}, s{S_RDY}, vcc_lo")
    def prep_x(n, checked=False, so=None):
        l, j = divmod(n, 16); so = so or S_SO
        if l > 0 and not checked:
            ensure(n); kc(j)
        if l == 0:
            e(f"s_lshl_b32 s{so}, s{S_KC}, 7\ns_add_u32 s{so}, s{so}, s{S_XB0}")
        else:
            e(f"s_lshl_b32 s{so}, s{S_KC}, 14\ns_add_u32 s{so}, s{so}, s{S_XBL}")
    def issue_x(n, so=None, mid=None):
        l, j = divmod(n, 16); slot = n % 4; so = so or S_SO
        e(f"s_add_u32 m0, s{S_LX}, {LDS_X + slot*16384}")
        e("s_nop 0")
        for ee in range(4 if not (p.exp_nox and l == 1 and j >= 5) else p.exp_nox - 1):
            if l == 0: e.vm_op(f"buffer_load_dwordx4 v{XV0+ee}, s[{SRD_X}:{SRD_X+3}], s{so} offen offset:{ee*1024} {p.x0f01 if n < 2 else p.x0f} lds", ("x",n))
            else:
                sd = SRD_O if (l == 1 and p.x1_in_out) else SRD_WS
                if p.exp_vgpr and l == 1 and j >= 5:
                    e.vm_op(f"buffer_load_dwordx4 v[{64+4*ee}:{67+4*ee}], v{XV1}, s[{sd}:{sd+3}], s{so} offen offset:{ee*1024} {p.x_flags}", ("x",n))
                elif p.tid:
                    st_ = SRD_T1 if l == 1 else SRD_T2
                    e.vm_op(f"buffer_load_dwordx4 off, s[{st_}:{st_+3}], s{so} offset:{ee*1024} {p.x_flags} lds", ("x",n))
                else:
                    fl = p.x_flags + (" nt" if ((l == 2 and j >= p.x2_last) or (l == 1 and j >= p.x1_last)) else "")
                    e.vm_op(f"buffer_load_dwordx4 v{XV1}, s[{sd}:{sd+3}], s{so} offen offset:{ee*1024} {fl} lds", ("x",n))
            if ee == 0 and mid: mid()
    def prep_w(n, sreg=None):
        l, j = divmod(n, 16); sreg = sreg or S_SW
        kc(j)
        if l > 0 and j == 0:
            e(f"s_add_u32 s{S_WBL}, s{S_WB1}, {0 if p.wsame else l*(2<<20)}")
        e(f"s_lshl_b32 s{sreg}, s{S_KC}, 17\ns_add_u32 s{sreg}, s{sreg}, s{S_WB0 if l == 0 else S_WBL}")
    m0_now = [None]
    def set_m0(val):
        if m0_now[0] == val:
            m0_now[0] = None; return
        e(f"s_add_u32 m0, s{S_LX}, {val}")
        e("s_nop 0")
    def preset_m0(val):
        e(f"s_add_u32 m0, s{S_LX}, {val}"); m0_now[0] = val
    def issue_w(n, sreg=None, mid=None):
        l, j = divmod(n, 16); slot = n % 4; sreg = sreg or S_SW
        set_m0(LDS_W + slot*16384)
        wv = WV0 if l == 0 else WV1
        for ee in range(3 if cdma_stage(p, n) else 4):
            e.vm_op(f"buffer_load_dwordx4 v{wv+ee}, s[{SRD_W}:{SRD_W+3}], s{sreg} offen offset:{ee*1024} {(p.w0lead if 2 <= n <= 5 and p.w0lead else p.w0f) if n < 16 else ''} lds", ("w",n))
            if ee == 0 and mid: mid()
    def dma_x(n, checked=False):
        kc(n % 16)
        prep_x(n, checked); issue_x(n)
    def dma_w(n):
        prep_w(n); issue_w(n)
    def plan(n):
        l, j = divmod(n, 16)
        sw, sw2, so = (S_SW, S_SWB, S_SO) if n % 2 == 0 else (S_SW2, S_SWB2, S_SO2)
        prog = l in p.prog_layers
        if p.dw == 4:
            xs = [n+3] if j <= 12 else []
            last_w = 47 if l == 2 else (16*l + 17 if prog else 16*l + 19)
            wsn = [m for m in ([n+3, n+4] if (l > 0 and j == 1) else [n+4]) if m <= last_w]
            def prep():
                for m, reg in zip(wsn, (sw, sw2)): prep_w(m, reg)
                for m in xs:
                    kc(m % 16); prep_x(m, so=so)
            def issue(mid):
                done = [False]
                def mid1():
                    if not done[0]:
                        done[0] = True
                        if mid: mid()
                if len(wsn) == 2: issue_w(wsn[0], sw, mid1)
                for m in xs: issue_x(m, so, mid1)
                if wsn: issue_w(wsn[-1], (sw, sw2)[len(wsn)-1], mid1)
                mid1()
            return (prep, issue)
        if j == 13:
            if l == 2: return (lambda: None, lambda mid: mid and mid())
            return (lambda: (prep_w(n+3, sw), prep_w(n+4, sw2)), lambda mid: (issue_w(n+3, sw, mid), issue_w(n+4, sw2)))
        if j in (14, 15):
            if l == 2: return (lambda: None, lambda mid: mid and mid())
            return (lambda: prep_w(n+4, sw), lambda mid: issue_w(n+4, sw, mid))
        m = n + 3
        return (lambda: (prep_w(m, sw), prep_x(m, so=so)), lambda mid: (issue_w(m, sw, mid), issue_x(m, so)))

    e("s_waitcnt lgkmcnt(0)")
    srd(e, SRD_X, 4, 8<<20); srd(e, SRD_W, 6, 6<<20)
    if p.stamps: e("v_mov_b32 v60, 0\nv_writelane_b32 v60, s66, 0\nv_writelane_b32 v60, s68, 32")
    def w0_touch(k0, k1):
        if k0 == 0:
            e(f"s_lshl_b32 s{S_T0}, s2, 13\ns_lshl_b32 s{S_T0+1}, s{S_A}, 11\ns_add_u32 s{S_T0}, s{S_T0}, s{S_T0+1}")
            e(f"s_add_u32 s{S_PB}, s6, s{S_T0}\ns_addc_u32 s{S_PB+1}, s7, 0")
        for k in range(k0, k1): e(f"s_load_dword s{80 + k % 16}, s[{S_PB}:{S_PB+1}], {k * 64}")
    def lpf():
        e(f"s_lshl_b32 s{S_T0}, s2, 13\ns_lshl_b32 s{S_T0+1}, s{S_A}, 11\ns_add_u32 s{S_T0}, s{S_T0}, s{S_T0+1}")
        e(f"v_lshlrev_b32 v{XV1}, 4, v0\ns_mov_b32 m0, {LDS_DUMMY}")
        e("s_nop 0")
        e.vm_op(f"buffer_load_dwordx4 v{XV1}, s[{SRD_W}:{SRD_W+3}], s{S_T0} offen lds", ("pf",0))
        e(f"s_add_u32 s{S_T0}, s{S_T0}, 1024")
        e.vm_op(f"buffer_load_dwordx4 v{XV1}, s[{SRD_W}:{SRD_W+3}], s{S_T0} offen lds", ("pf",0))
    if p.w0pf and p.w0pf_pos == 0: w0_touch(0, p.w0pf)
    if p.lpf0 == 0: lpf()
    dma_x(0); dma_w(0)
    if p.lpf0 == 1: lpf()
    if p.w0pf and p.w0pf_pos == 1: w0_touch(0, p.w0pf)
    srd(e, SRD_WS, 40, WS_SIZE); srd(e, SRD_B, 44, 6144); srd(e, SRD_O, 42, 8<<20)
    if p.tid:
        for b, lo in ((SRD_T1, 42 if p.x1_in_out else 40), (SRD_T2, 40)):
            e(f"s_mov_b32 s{b}, s{lo}\ns_and_b32 s{b+1}, s{lo+1}, 0xffff\ns_or_b32 s{b+1}, s{b+1}, 0x100000\ns_mov_b32 s{b+2}, 64\ns_mov_b32 s{b+3}, 0x00800000")
    e(f"s_min_u32 s{S_T0}, s{S_A}, 2\ns_lshl_b32 s{S_T0+1}, s{S_T0}, 8\ns_add_u32 m0, s{S_T0+1}, {LDS_B}")
    e(f"s_lshl_b32 s{S_T0+1}, s{S_T0}, 11\ns_lshl_b32 s{S_T0+2}, s{S_C}, 8\ns_add_u32 s{S_T0+1}, s{S_T0+1}, s{S_T0+2}")
    e(f"v_lshlrev_b32 v{T}, 2, v0")
    e.vm_op(f"buffer_load_dword v{T}, s[{SRD_B}:{SRD_B+3}], s{S_T0+1} offen lds", ("b",0))
    dma_x(1); dma_w(1)
    if p.lpf0 == 2: lpf()
    e(f"v_lshlrev_b32 v{XV1}, 4, v0")
    e(f"v_xor_b32 v{T+3}, 128, v{WV0}")
    e(f"v_mov_b32 v{WV1}, v{WV0}\nv_add_u32 v{WV1+1}, {4*2048-1024}, v{T+3}\nv_add_u32 v{WV1+2}, {8*2048-2048}, v{WV0}\nv_add_u32 v{WV1+3}, {12*2048-3072}, v{T+3}")
    e(f"s_lshl_b32 s{S_XB1}, s{S_G}, 18\ns_add_u32 s{S_XB1}, s{S_XB1}, s{S_LX}")
    e(f"s_lshl_b32 s{S_WB1}, s{S_A}, 15\ns_lshl_b32 s{S_T0+1}, s{S_C}, 8\ns_add_u32 s{S_WB1}, s{S_WB1}, s{S_T0+1}")
    e(f"s_lshr_b32 s{S_T0}, s{S_G}, 3\ns_lshl_b32 s{S_T0}, s{S_T0}, 2\ns_lshr_b32 s{S_OFF}, {sum(o << (4*i) for i,o in enumerate(p.moff))}, s{S_T0}\ns_and_b32 s{S_OFF}, s{S_OFF}, 15")
    e(f"s_lshl_b32 s{S_T0}, s{S_G}, 8\ns_add_u32 s{S_T0}, s{S_T0}, {WS_FLAG}")
    e(f"v_and_b32 v{T+1}, 31, v0\nv_lshlrev_b32 v{T+1}, 2, v{T+1}\nv_add_u32 v{T+1}, s{S_T0}, v{T+1}")
    build_tab()
    stamp(e,p,1,LSR)
    e.vm_need([("x",0),("w",0),("b",0)])
    stamp(e,p,2,LSR)
    e("s_barrier")
    if p.dw == 4:
        dma_x(2); dma_w(2); dma_w(3)
    else:
        dma_w(2); dma_x(2)
    if p.w0pf and p.w0pf < 32: w0_touch(p.w0pf, min(32, p.w0pf + 12))
    prepped = set()
    e.pace = p.exp_pace
    for l in range(3):
        prog = l in p.prog_layers
        for j in range(14 if prog else 16):
            n = 16*l + j
            if l > 0 and j == 0: continue
            if n == 47: continue
            prep, issue = plan(n)
            polled = l > 0 and 1 <= j <= p.apoll
            if n not in prepped and not polled: prep()
            e.vm_need([("x",n+1),("w",n+1)])
            if polled:
                poll_collect(("ap", n-1)); prep()
            if n in (17,33): stamp(e,p,5+3*(n//16-1),LSR)
            if p.stage_stamps is not False and n//16 == p.stage_stamps: stamp(e,p,16+n%16,LSR)
            if p.m0pre and p.dw == 3:
                first_w = (n+3 if j <= 13 else n+4) if not (l == 2 and j >= 13) else None
                if first_w is not None and first_w <= 47: preset_m0(LDS_W + (first_w % 4)*16384)
            if n in p.barw: e("s_memtime s[92:93]")
            e("s_barrier")
            if n in p.barw:
                e(f"s_memtime s[94:95]\ns_waitcnt lgkmcnt(0)\ns_sub_u32 s94, s94, s92\nv_writelane_b32 v60, s94, {16+p.barw.index(n)}")
            for _ in range(p.ldelay): e("s_nop 15")
            if l > 0 and 1 <= j < p.apoll: poll_async(l, ("ap", n))
            def mid(n=n, l=l, j=j):
                if n == 0:
                    e(f"s_lshl_b32 s{S_T0}, s{S_G}, 7\ns_add_u32 s{S_T0}, s{S_T0}, {WS_V}")
                    e(f"s_load_dword s{S_TAG}, s[40:41], s{S_T0}")
                if n == 12:
                    e("s_waitcnt lgkmcnt(0)")
                    e(f"s_add_u32 s{S_TAG}, s{S_TAG}, {TAGK}")
                if p.lspf and l < 2:
                    ntouch = 2048 // p.lspf
                    ls, per = p.lspf_start, p.lspf_per
                    k0 = (j - ls) * per
                    if j == ls:
                        e(f"s_lshl_b32 s{S_T0}, s2, 13\ns_lshl_b32 s{S_T0+1}, s{S_A}, 11\ns_add_u32 s{S_T0}, s{S_T0}, s{S_T0+1}\ns_add_u32 s{S_T0}, s{S_T0}, {(l+1)*(2<<20)}")
                        e(f"s_add_u32 s{S_PB}, s6, s{S_T0}\ns_addc_u32 s{S_PB+1}, s7, 0")
                    for k in (range(max(k0,0), min(k0 + per, ntouch)) if j >= ls else []):
                        e(f"s_load_dword s{80 + k % (4 if p.tid else 16)}, s[{S_PB}:{S_PB+1}], {k * p.lspf}")
                nx = n + 1
                l2, j2 = divmod(nx, 16)
                if l2 == l and j2 <= (13 if prog else 15) and nx != 47 and not (l2 > 0 and 1 <= j2 <= p.apoll):
                    plan(nx)[0](); prepped.add(nx)
            issue(mid)
        if prog:
            e.vm_need([("x",16*l+15),("w",16*l+15)])
            e("s_barrier")
        if l < 2:
            n1 = 16*(l+1)
            if prog:
                prep_w(n1+2); e(f"s_mov_b32 s{S_SW2}, s{S_SW}"); prep_w(n1+3)
                e("s_barrier")
                issue_w(n1+2, S_SW2); issue_w(n1+3, S_SW)
            e.vm_need([("w",n1),("w",n1+1)])
            e("s_barrier")
            stamp(e,p,3+3*l,LSR)
            e(f"s_lshl_b32 s{S_RDY}, s{S_C}, 2\ns_lshl_b32 s{S_RDY}, 15, s{S_RDY}")
            e(f"s_add_u32 s{S_XBL}, s{S_XB1}, {WS_X2 if l == 1 else WS_X1}")
            ensure(n1+2, also=n1+3)
            dma_x(n1+2, True); stamp(e,p,4+3*l,LSR)
            if p.apoll: poll_async(l+1, ("ap", n1))
            dma_x(n1+3, True)
        else:
            e(f"s_cmp_eq_u32 s{S_C}, 0\ns_cbranch_scc0 L_nov\ns_cmp_eq_u32 s{S_A}, 0\ns_cbranch_scc0 L_nov")
            e(f"v_mov_b32 v{T+3}, s{S_TAG}\ns_lshl_b32 s{S_T0}, s{S_G}, 7\ns_add_u32 s{S_T0}, s{S_T0}, {WS_V}\nv_mov_b32 v{T+4}, s{S_T0}")
            e(f"buffer_store_dword v{T+3}, v{T+4}, s[{SRD_WS}:{SRD_WS+3}], 0 offen sc1")
            e.label("L_nov")
    if p.stamps:
        e("s_waitcnt vmcnt(0)")
        stamp(e,p,15,LSR)
        stamp_out(e,p,60)

def gen(p=None):
    p = p or P()
    CUR["order"] = p.order
    e = Em()
    hdr = f"""; DCN-v2 cross network, 3 layers fused in one launch.  Generated by my own generator script.
; @launch grid=(256,1,1) block=(512,1,1) lds={LDS_SIZE}
.amdgcn_target "amdgcn-amd-amdhsa--gfx950"
.text
.globl {KNAME}
.p2align 8
.type {KNAME},@function
{KNAME}:"""
    e(f"s_cmp_ge_u32 s2, 256\ns_cbranch_scc1 L_end")
    if p.stamps: e("s_memtime s[66:67]\ns_memrealtime s[68:69]\ns_waitcnt lgkmcnt(0)")
    if p.enc: e("s_memrealtime s[68:69]")
    e("s_load_dwordx4 s[4:7], s[0:1], 0")
    e("s_load_dwordx2 s[44:45], s[0:1], 16")
    e("s_load_dwordx2 s[42:43], s[0:1], 24")
    e("s_load_dwordx2 s[40:41], s[0:1], 40")
    e(f"v_lshrrev_b32 v1, 6, v0\ns_lshr_b32 s{S_C}, s2, 3\ns_and_b32 s{S_C}, s{S_C}, 7")
    e(f"s_lshr_b32 s{S_G}, s2, 6\ns_lshl_b32 s{S_G}, s{S_G}, 3\ns_and_b32 s{S_T0}, s2, 7\ns_add_u32 s{S_G}, s{S_G}, s{S_T0}")
    e(f"v_readfirstlane_b32 s{S_WAVE}, v1")
    e("s_nop 3")
    e(f"s_cmp_ge_u32 s{S_WAVE}, 4\ns_cbranch_scc1 L_loader")
    gen_compute(e, p)
    gen_loader(e, p)
    e.label("L_end")
    e("s_endpgm")
    tail = f""".section .rodata,"a"
.p2align 6
.amdhsa_kernel {KNAME}
  .amdhsa_next_free_vgpr 256
  .amdhsa_next_free_sgpr 102
  .amdhsa_accum_offset 256
  .amdhsa_group_segment_fixed_size 0
  .amdhsa_kernarg_size 48
  .amdhsa_user_sgpr_count 2
  .amdhsa_user_sgpr_kernarg_segment_ptr 1
  .amdhsa_system_sgpr_workgroup_id_x 1
.end_amdhsa_kernel
"""
    return hdr + "\n" + e.text() + "\n" + tail

if __name__ == "__main__":
    p = P()
    for a in sys.argv[1:]:
        k, v = a.split("=")
        setattr(p, k, eval(v))
    sys.stdout.write(gen(p))
```

```python
import sys

KNAME = "standalone__cross_network_dcn__recsys_kernel"

class P:
    stamps = False; stage_stamps = False
    bar_gap = 3; dbl = 0; dbl0 = 0
    prio = 2
    poll_max = 20000
    a_only = 12
    nosync = False
    order = "c"
    mrot = True
    out_flags = "nt"
    st_flags = "sc1"
    x_flags = "sc1"
    wsame = False
    stampreg = 15
    pub_gap = 3
    apoll = 2
    lspf = 0; lspf_per = 3; lspf_start = 1
    nostore = False
    prog_layers = (2,)
    force_fast = None
    x_slow = ()
    x1_in_out = False
    b15_gap = 4
    dw = 3
    chain2 = True
    c2_bar = 0
    c2_bal = False
    lpf0 = None
    x1_last = 10
    x2_last = 10
    tlbw = None
    cpf = ((1,4,1),(1,5,1),(2,17,1),(2,17,2))
    enc = None
    x0f01 = ''; x0f = ''; w0f = ''
    w0lead = ''
    w0pf = 0
    w0pf_pos = 1
    dsw_lag = 0
    exp_b128 = False
    span0 = None
    exp_nowait = 0
    exp_loop = False
    exp_pace = 0
    barw = ()
    tid = False
    exp_vgpr = False
    coarse = 0
    exp_nox = 0
    cdma = 0
    ldelay = 0
    cd_gap = 2
    m0pre = False
    moff = (0,4,8,12)
    prog_pk = False
    pub_pre = False
    init = "B"

LDS_X = 0
LDS_W = 65536
LDS_B = 131072
LDS_DUMMY = 131072 + 1024
LDS_SIZE = 131072 + 1024 + 1024
WS_X1 = 0
WS_X2 = 8 << 20
WS_FLAG = 16 << 20
WS_FLAGB = (16 << 20) + 0x8000
WS_V = (16 << 20) + 0x10000
WS_XC = (16 << 20) + 0x18000
WS_STAMP = (17 << 20)
WS_SIZE = (18 << 20)
TAGK = 0x6A09E667
TAGX = 0x3C6EF372

class Em:
    def __init__(s):
        s.L = []; s.lds = []; s.vm = []; s.n = 0; s.mw = {}
    def __call__(s, t):
        for x in t.split("\n"):
            x = x.strip()
            if not x: continue
            if x.endswith(":"): s.L.append(x); continue
            s.L.append("    " + x)
            s.n += (int(x.split()[1]) + 1) if x.startswith("s_nop") else 1
    def label(s, n): s.L.append(n + ":")
    def lds_op(s, text, dst=()):
        s(text); s.lds.append(set(dst))
    def need(s, regs):
        regs = set(regs); last = -1
        for i, d in enumerate(s.lds):
            if d & regs: last = i
        if last >= 0:
            n = min(len(s.lds) - 1 - last, 15)
            s(f"s_waitcnt lgkmcnt({n})")
            s.lds = s.lds[len(s.lds)-n:] if n else []
    def lds_all(s):
        if s.lds: s("s_waitcnt lgkmcnt(0)")
        s.lds = []
    pace = 0
    def vm_op(s, text, tag):
        s(text); s.vm.append(tag)
        if s.pace and " lds" in text and "dwordx4" in text:
            k = s.pace
            while k > 0:
                s(f"s_nop {min(k,16)-1}"); k -= 16
    def vm_need(s, tags):
        last = -1
        for i, t in enumerate(s.vm):
            if t in tags: last = i
        if last >= 0:
            n = len(s.vm) - 1 - last
            assert n <= 63, n
            s(f"s_waitcnt vmcnt({n})")
            s.vm = s.vm[last+1:]
    def mfma(s, a, w, x, c):
        s(f"v_mfma_f32_16x16x32_bf16 {vr(a,4)}, {vr(w,4)}, {vr(x,4)}, {vr(c,4)}")
        for r in range(a, a+4): s.mw[r] = s.n
    def after_mfma(s, regs):
        last = max([s.mw.get(r, -99) for r in regs])
        gap = s.n - last
        if gap < 9: s(f"s_nop {9 - gap - 1}")
    def text(s): return "\n".join(s.L)

def R(a, n): return list(range(a, a+n))
def vr(a, n): return f"v[{a}:{a+n-1}]" if n > 1 else f"v{a}"

V_LANE = 0
V_XA0, V_XA1 = 1, 2
V_WA = 3
V_LW = 7
V_L16 = 8
V_FO = 9; V_FD = 10
V_T = 11
ACC = 16; FR = 80; X0F = 144; RES = 208; BIAS = 240
def acc(rt, ct): return ACC + (rt*4+ct)*4
def xfr(st, rt): return FR + st*32 + rt*4
def wfr(st, ct): return FR + st*32 + 16 + ct*4
def x0f(rt, ct): return X0F + (rt*4+ct)*4
def res(rt, ct): return RES + (rt*4+ct)*2

SNAKE_R = [(rt, ct) for rt in range(4) for ct in (range(4) if rt % 2 == 0 else range(3, -1, -1))]
SNAKE_C = [(rt, ct) for ct in range(4) for rt in (range(4) if ct % 2 == 0 else range(3, -1, -1))]
ORDER = {"r": SNAKE_R, "c": SNAKE_C}
CUR = {"order": "c"}

S_WAVE=3
SRD_X=8; SRD_W=12; SRD_WS=16; SRD_O=20; SRD_B=24
S_G=28; S_C=29; S_A=30; S_B2=31
S_TAG=32; S_MASK=33
S_T0=34
S_SWB=46; S_XB0=48; S_XB1=49; S_SWB2=50; S_WB0=51; S_WB1=52; S_LX=53; S_KC=54; S_SO=55; S_SW=56; S_CNT=57; S_XBL=58
S_FB=59; S_STO=60; S_STO2=61
S_RDY=70; S_NEED=71; S_OFF=72; S_PO=73; S_FAST=74; S_XT=75; S_NEED2=76; S_SW2=78; S_WBL=79
S_PB=96; S_TAB=98; S_SO2=100
SRD_T1=84; SRD_T2=88; S_PFC=77

LSR = 60
def stamp(e, p, idx, reg=None):
    if not p.stamps: return
    reg = reg or p.stampreg
    e(f"s_memtime s[62:63]\ns_memrealtime s[64:65]\ns_waitcnt lgkmcnt(0)\nv_writelane_b32 v{reg}, s62, {idx}\nv_writelane_b32 v{reg}, s64, {idx+32}")
    e.lds = []
def stamp_out(e, p, reg):
    if not p.stamps: return
    e(f"s_lshl_b32 s62, s2, 3\ns_add_u32 s62, s62, s{S_WAVE}\ns_lshl_b32 s62, s62, 8\ns_add_u32 s62, s62, {WS_STAMP}")
    e(f"v_mbcnt_lo_u32_b32 v40, -1, 0\nv_mbcnt_hi_u32_b32 v40, -1, v40\nv_lshlrev_b32 v40, 2, v40")
    e(f"buffer_store_dword v{reg}, v40, s[{SRD_WS}:{SRD_WS+3}], s62 offen")

def enc_point(e, p, name):
    if p.enc and p.enc[0] == name:
        e("s_memrealtime s[66:67]\ns_waitcnt lgkmcnt(0)"); e.lds = []
def srd(e, b, lo, size):
    e(f"s_mov_b32 s{b}, s{lo}\ns_mov_b32 s{b+1}, s{lo+1}\ns_mov_b32 s{b+2}, {size}\ns_mov_b32 s{b+3}, 0x00020000")

def xread_to(e, r, rt, u, slot):
    e.lds_op(f"ds_read_b128 {vr(r,4)}, v{V_XA0+u} offset:{slot*16384 + rt*2048}", R(r,4))
def wread_to(e, r, ct, u, h, slot):
    if CUR.get('b128'):
        if h == 0: e.lds_op(f"ds_read_b128 {vr(r,4)}, v{V_L16} offset:{(slot*16384 + u*8192 + ct*1024) % 65536}", R(r,4))
        return
    e.lds_op(f"ds_read_b64_tr_b16 {vr(r+2*h,2)}, v{V_WA+ct} offset:{slot*16384 + u*8192 + h*4096}", R(r+2*h,2))

def frag_reads(st, u, slot, only=None):
    def W(ct,h): return lambda e: wread_to(e, wfr(st,ct), ct, u, h, slot)
    def X(rt): return lambda e: xread_to(e, xfr(st,rt), rt, u, slot)
    if CUR["order"] == "r":
        seq = [("w",W(0,0)),("w",W(0,1)),("x",X(0)),("w",W(1,0)),("w",W(1,1)),("w",W(2,0)),("w",W(2,1)),
               ("w",W(3,0)),("w",W(3,1)),("x",X(1)),("x",X(2)),("x",X(3))]
    else:
        seq = [("w",W(0,0)),("w",W(0,1)),("x",X(0)),("x",X(1)),("x",X(2)),("x",X(3)),("w",W(1,0)),("w",W(1,1)),
               ("w",W(2,0)),("w",W(2,1)),("w",W(3,0)),("w",W(3,1))]
    return [f for k,f in seq if only is None or k == only]

def step(e, p, st, fills, first=False):
    for m,(rt,ct) in enumerate(ORDER[CUR['order']]):
        a = acc(rt,ct); w = wfr(st,ct); x = xfr(st,rt)
        if p.coarse and CUR['order'] == 'c' and m == 0:
            e.need(R(w,4)+R(xfr(st,0),16 if p.coarse == 1 else 8))
        if p.coarse == 2 and CUR['order'] == 'c' and m == 2:
            e.need(R(xfr(st,2),8))
        if not CUR.get('nowait'): e.need(R(w,4)+R(x,4))
        e.mfma(a, w, x, BIAS+ct*4 if first else a)
        for f in fills.get(m, []): f(e)

def spread(items, start, end, dbl=0):
    d = {}; g = start; i = 0
    while i < len(items):
        n = 2 if (g - start) < dbl else 1
        for k in range(n):
            if i < len(items): d.setdefault(min(g, end), []).append(items[i]); i += 1
        g += 1
    return d
def spread_even(items, start, end):
    d = {}; n = len(items); span = end - start + 1
    for i, it in enumerate(items):
        d.setdefault(start + (i * span) // n, []).append(it)
    return d
def merge(*ds):
    o = {}
    for d in ds:
        for k,v in d.items(): o.setdefault(k, []).extend(v)
    return o

def cdma_stage(p, m):
    if not p.cdma or p.dw != 3: return False
    n = m - 3; l, j = divmod(n, 16)
    return n >= 0 and 2 <= j <= 12

def gen_compute(e, p):
    e.label("L_compute")
    e(f"s_and_b32 s{S_B2}, s{S_WAVE}, 1\ns_lshr_b32 s{S_A}, s{S_WAVE}, 1")
    e(f"s_setprio {p.prio}")
    T=V_T
    e(f"v_and_b32 v{V_LANE}, 63, v0")
    e(f"v_and_b32 v{T}, 15, v{V_LANE}")
    e(f"v_lshrrev_b32 v{T+1}, 4, v{V_LANE}")
    e(f"v_lshrrev_b32 v{T+2}, 1, v{T}")
    e(f"v_xor_b32 v{T+3}, v{T+2}, v{T+1}\nv_lshlrev_b32 v{T+3}, 4, v{T+3}")
    e(f"v_lshlrev_b32 v{T+4}, 7, v{T}\nv_add_u32 v{T+3}, v{T+3}, v{T+4}")
    e(f"s_lshl_b32 s{S_T0}, s{S_A}, 13")
    e(f"v_add_u32 v{V_XA0}, s{S_T0}, v{T+3}\nv_xor_b32 v{V_XA1}, 64, v{V_XA0}")
    e(f"v_lshrrev_b32 v{T+3}, 1, v{T+1}\nv_xor_b32 v{T+3}, v{T+3}, v{T+2}\nv_lshlrev_b32 v{T+3}, 4, v{T+3}")
    e(f"v_add_u32 v{T+3}, v{T+3}, v{T+4}\nv_and_b32 v{T+4}, 1, v{T+1}\nv_lshlrev_b32 v{T+4}, 3, v{T+4}\nv_add_u32 v{T+3}, v{T+3}, v{T+4}")
    e(f"s_lshl_b32 s{S_T0+1}, s{S_B2}, 14\ns_add_u32 s{S_T0+1}, s{S_T0+1}, s{S_T0}")
    e(f"v_add_u32 v{V_LW}, s{S_T0+1}, v{T+3}")
    e(f"v_lshrrev_b32 v{T+2}, 2, v{T}\nv_lshlrev_b32 v{T+3}, 2, v{T+1}\nv_add_u32 v{T+2}, v{T+2}, v{T+3}")
    e(f"v_and_b32 v{T+3}, 7, v{T+2}")
    e(f"v_lshlrev_b32 v{T+2}, 8, v{T+2}\nv_and_b32 v{T+4}, 3, v{T}\nv_lshlrev_b32 v{T+4}, 3, v{T+4}\nv_add_u32 v{T+2}, v{T+2}, v{T+4}")
    e(f"v_add_u32 v{T+2}, {LDS_W}, v{T+2}")
    e(f"s_lshl_b32 s{S_T0+2}, s{S_B2}, 2")
    for ct in range(4):
        e(f"s_add_u32 s{S_T0+3}, s{S_T0+2}, {ct}\nv_xor_b32 v{T+4}, s{S_T0+3}, v{T+3}\nv_lshlrev_b32 v{T+4}, 5, v{T+4}\nv_add_u32 v{V_WA+ct}, v{T+2}, v{T+4}")
    e(f"v_lshlrev_b32 v{V_L16}, 4, v{V_LANE}")
    e(f"s_mov_b32 s{S_MASK}, 0xffff0000")
    e(f"s_lshl_b32 s{S_T0+3}, s{S_G}, 8\ns_lshl_b32 s{S_T0+4}, s{S_C}, 4\ns_add_u32 s{S_T0+3}, s{S_T0+3}, s{S_T0+4}")
    e(f"s_lshl_b32 s{S_T0+4}, s{S_WAVE}, 2\ns_add_u32 s{S_T0+3}, s{S_T0+3}, s{S_T0+4}\ns_add_u32 s{S_T0+3}, s{S_T0+3}, {WS_FLAG}")
    e(f"v_mov_b32 v{V_FO}, 0x7ffffff0\nv_mov_b32 v{T+4}, s{S_T0+3}\nv_cmp_eq_u32 vcc, 0, v{V_LANE}\ns_nop 1\nv_cndmask_b32 v{V_FO}, v{V_FO}, v{T+4}, vcc")
    e(f"s_mov_b32 s{S_FB}, {WS_FLAGB-WS_FLAG}")
    e(f"s_lshl_b32 s{S_STO}, s{S_G}, 18\ns_lshl_b32 s{S_T0+3}, s{S_C}, 15\ns_add_u32 s{S_STO}, s{S_STO}, s{S_T0+3}\ns_add_u32 s{S_STO}, s{S_STO}, s{S_T0+1}")
    e(f"s_add_u32 s{S_STO2}, s{S_STO}, 4096")
    e("s_waitcnt lgkmcnt(0)"); srd(e, SRD_WS, 40, WS_SIZE); srd(e, SRD_O, 42, 8<<20)
    if p.cpf:
        srd(e, SRD_W, 6, 6<<20)
        e(f"s_lshl_b32 s{S_PFC}, s2, 13\ns_lshl_b32 s{S_T0}, s{S_WAVE}, 11\ns_add_u32 s{S_PFC}, s{S_PFC}, s{S_T0}")
    if p.cdma:
        srd(e, SRD_W, 6, 6<<20)
        e(f"s_lshl_b32 s{S_LX}, s{S_WAVE}, 12\ns_add_u32 s{S_LX}, s{S_LX}, {LDS_W + 3072}")
        e(f"s_lshr_b32 s{S_T0}, s{S_WAVE}, 1\ns_lshl_b32 s{S_T0}, s{S_T0}, 5\ns_and_b32 s{S_T0+3}, s{S_WAVE}, 1\ns_lshl_b32 s{S_T0+3}, s{S_T0+3}, 2\ns_add_u32 s{S_T0}, s{S_T0}, s{S_T0+3}")
        e(f"s_lshl_b32 s{S_WB0}, s{S_T0}, 11\ns_lshl_b32 s{S_T0+3}, s{S_C}, 8\ns_add_u32 s{S_WB0}, s{S_WB0}, s{S_T0+3}")
        e(f"s_lshl_b32 s{S_WB1}, s{S_WAVE}, 15\ns_add_u32 s{S_WB1}, s{S_WB1}, s{S_T0+3}")
        e(f"s_lshr_b32 s{S_T0}, s{S_G}, 3\ns_lshl_b32 s{S_T0}, s{S_T0}, 2\ns_lshr_b32 s{S_OFF}, {sum(o << (4*i) for i,o in enumerate(p.moff))}, s{S_T0}\ns_and_b32 s{S_OFF}, s{S_OFF}, 15")
        e(f"s_mov_b32 s{S_TAB}, 0\ns_mov_b32 s{S_TAB+1}, 0")
        for j in range(16):
            if j < 2 or not p.mrot:
                e(f"s_lshl_b32 s{S_KC}, s{S_C}, 1\ns_add_u32 s{S_KC}, s{S_KC}, {j}\ns_and_b32 s{S_KC}, s{S_KC}, 15")
            else:
                e(f"s_add_u32 s{S_KC}, s{S_OFF}, {j-2}\ns_cmp_ge_u32 s{S_KC}, 14\ns_cselect_b32 s{S_T0+5}, 14, 0\ns_sub_u32 s{S_KC}, s{S_KC}, s{S_T0+5}")
                e(f"s_lshl_b32 s{S_T0+5}, s{S_C}, 1\ns_add_u32 s{S_KC}, s{S_KC}, s{S_T0+5}\ns_add_u32 s{S_KC}, s{S_KC}, 2\ns_and_b32 s{S_KC}, s{S_KC}, 15")
            e(f"s_lshl_b32 s{S_KC}, s{S_KC}, {4*(j%8)}\ns_or_b32 s{S_TAB+j//8}, s{S_TAB+j//8}, s{S_KC}")
    e(f"s_lshl_b32 s{S_T0}, s{S_G}, 7\ns_add_u32 s{S_T0}, s{S_T0}, {WS_V}")
    e(f"s_load_dword s{S_TAG}, s[40:41], s{S_T0}")
    e(f"s_getreg_b32 s{S_XT}, hwreg(HW_REG_XCC_ID, 0, 4)")
    e("s_waitcnt lgkmcnt(0)")
    e(f"s_add_u32 s{S_XT}, s{S_XT}, s{S_TAG}\ns_add_u32 s{S_XT}, s{S_XT}, {TAGX}")
    e(f"s_add_u32 s{S_TAG}, s{S_TAG}, {TAGK}\nv_mov_b32 v{V_FD}, s{S_TAG}")
    use_xc = p.force_fast is None
    def op_xc(e):
        e(f"s_lshl_b32 s{S_T0}, s{S_G}, 7\ns_lshl_b32 s{S_T0+1}, s{S_C}, 2\ns_add_u32 s{S_T0}, s{S_T0}, s{S_T0+1}\ns_add_u32 s{S_T0}, s{S_T0}, {WS_XC}")
        e(f"v_mov_b32 v{T+2}, 0x7ffffff0\nv_mov_b32 v{T+3}, s{S_T0}\nv_cmp_eq_u32 vcc, 0, v{V_LANE}\ns_nop 1\nv_cndmask_b32 v{T+2}, v{T+2}, v{T+3}, vcc\nv_mov_b32 v{T+3}, s{S_XT}")
        e(f"buffer_store_dword v{T+3}, v{T+2}, s[{SRD_WS}:{SRD_WS+3}], 0 offen sc1")
    if not use_xc: e(f"s_mov_b32 s{S_FAST}, {int(p.force_fast)}")
    def op_touch(e):
        e(f"s_lshl_b32 s{S_T0}, s{S_G}, 8\ns_add_u32 s{S_T0}, s{S_T0}, {WS_FLAG}\nv_lshlrev_b32 v{T+2}, 2, v{V_LANE}")
        e(f"s_mov_b32 m0, {LDS_DUMMY}\ns_nop 0")
        e(f"buffer_load_dword v{T+2}, s[{SRD_WS}:{SRD_WS+3}], s{S_T0} offen sc1 lds")

    def bias_reads(l):
        def f0(e):
            e(f"v_lshrrev_b32 v{T}, 4, v{V_LANE}\nv_lshlrev_b32 v{T}, 3, v{T}\ns_lshl_b32 s{S_T0}, s{S_B2}, 7\ns_add_u32 s{S_T0}, s{S_T0}, {LDS_B}\nv_add_u32 v{T}, s{S_T0}, v{T}")
        out=[f0]
        for ct in range(4):
            r = BIAS+ct*4+2
            out.append(lambda e, ct=ct, r=r: e.lds_op(f"ds_read_b64 {vr(r,2)}, v{T} offset:{l*256 + ct*32}", R(r,2)))
        return out
    def bias_unpack():
        out=[]
        for ct in range(4):
            b = BIAS+ct*4
            def f(e, b=b):
                e.need(R(b+2,2))
                e(f"v_lshlrev_b32 v{b}, 16, v{b+2}\nv_and_b32 v{b+1}, s{S_MASK}, v{b+2}")
                e(f"v_lshlrev_b32 v{b+2}, 16, v{b+3}\nv_and_b32 v{b+3}, s{S_MASK}, v{b+3}")
            out.append(f)
        return out

    if p.stamps: e("v_mov_b32 v15, 0\nv_writelane_b32 v15, s66, 0\nv_writelane_b32 v15, s68, 32")
    stamp(e,p,1)
    e("s_barrier")
    enc_point(e, p, "bfirst")
    stamp(e,p,2)
    def XR(par, rt, u): return FR + par*32 + (rt*2+u)*4
    def WR(ct, u): return RES + (ct*2+u)*4
    def rdX(par, rt, u, slot): return lambda e: xread_to(e, XR(par,rt,u), rt, u, slot)
    def rdW(ct, u, h, slot): return lambda e: wread_to(e, WR(ct,u), ct, u, h, slot)
    def reads_A(par, slot, only=None):
        seq = [("w",rdW(0,0,0,slot)),("w",rdW(0,0,1,slot)),("x",rdX(par,0,0,slot)),("w",rdW(0,1,0,slot)),("w",rdW(0,1,1,slot)),("x",rdX(par,0,1,slot)),
               ("x",rdX(par,1,1,slot)),("x",rdX(par,1,0,slot)),("x",rdX(par,2,0,slot)),("x",rdX(par,2,1,slot)),("x",rdX(par,3,1,slot)),("x",rdX(par,3,0,slot)),
               ("w",rdW(1,0,0,slot)),("w",rdW(1,0,1,slot)),("w",rdW(1,1,0,slot)),("w",rdW(1,1,1,slot))]
        return [f for k,f in seq if only is None or k == only]
    def reads_B(slot):
        return [rdW(ct,u,h,slot) for ct in (2,3) for u in range(2) for h in range(2)]
    def half(cts, par, fills, first=False):
        m = 0; k = 0
        for ci, ct in enumerate(cts):
            for rt in (range(4) if ci == 0 else range(3,-1,-1)):
                for ui, u in enumerate((0,1) if k % 2 == 0 else (1,0)):
                    a = acc(rt,ct); w = WR(ct,u); x = XR(par,rt,u)
                    e.need(R(w,4)+R(x,4))
                    e.mfma(a, w, x, BIAS+ct*4 if (first and ui == 0) else a)
                    for f in fills.get(m, []): f(e)
                    m += 1
                k += 1
    for f in bias_reads(0): f(e)
    for f in (reads_A(0,0) if p.chain2 else frag_reads(0,0,0)): f(e)
    for f in bias_unpack(): f(e)
    for k in range(16): e(f"v_add_f32 v{BIAS+k}, 1.0, v{BIAS+k}")
    e("s_nop 1")
    unpack_q = []
    order = ORDER[CUR['order']]
    def place_adds(q, gaps):
        d = {}
        for g in gaps:
            for i,(m,f) in enumerate(q):
                if 8 <= (g - m) % 16 <= 13:
                    d.setdefault(g, []).append(f); q.pop(i); break
        return d

    XBUF = [RES, RES+12]; TMP = RES+24
    def WP(ct, s): return (FR+32 if ct < 2 else FR) + ((ct % 2)*3 + (s-1))*4
    def XP(buf, s): return XBUF[buf] + (s-1)*4
    SU = {1:(2,1), 2:(3,0), 3:(3,1)}
    def wr_(ct, s, h): return lambda e: wread_to(e, WP(ct,s), ct, SU[s][1], h, SU[s][0])
    def xr_(buf, rt, s): return lambda e: xread_to(e, XP(buf,s), rt, SU[s][1], SU[s][0])

    def block_epilogue(l, bi, rt, t):
        P4 = BIAS + 4*(bi % 4)
        items = []
        for c2 in range(2):
            ct = 2*t + c2
            if p.prog_pk:
                for h in range(2):
                    def mul(e, ct=ct, h=h, c2=c2):
                        e.after_mfma([acc(rt,ct)+2*h, acc(rt,ct)+2*h+1])
                        e(f"v_pk_mul_f32 {vr(TMP+4*c2+2*h,2)}, {vr(x0f(rt,ct)+2*h,2)}, {vr(acc(rt,ct)+2*h,2)}")
                    items.append(mul)
            else:
                for r in range(4):
                    def mul(e, ct=ct, r=r, c2=c2):
                        e.after_mfma([acc(rt,ct)+r])
                        e(f"v_mul_f32 v{TMP+4*c2+r}, v{x0f(rt,ct)+r}, v{acc(rt,ct)+r}")
                    items.append(mul)
        cv = [lambda e, d=d: e(f"v_cvt_pk_bf16_f32 v{P4+d}, v{TMP+2*d}, v{TMP+2*d+1}") for d in range(4)]
        hn = len(items)//2
        seq = items[0:hn] + [cv[0], cv[1]] + items[hn:] + [cv[2], cv[3]]
        if l < 2:
            so = S_STO if rt < 2 else S_STO2
            if not p.nostore:
                sd = SRD_O if (l == 0 and p.x1_in_out) else SRD_WS
                seq.append(lambda e: e(f"buffer_store_dwordx4 {vr(P4,4)}, v{V_L16}, s[{sd}:{sd+3}], s{so} offen offset:{(rt%2)*2048+t*1024} {p.st_flags}"))
            seq.append(lambda e: e.lds_op(f"ds_write_b128 v{V_LW}, {vr(P4,4)} offset:{rt*2048+t*1024}"))
            return seq, []
        bo = (bi % 2)*1024; RB = T + 0 if False else None
        RD = FR + 56 + 4*(bi % 2)
        seq.append(lambda e: e.lds_op(f"ds_write_b64 v{V_LW}, {vr(P4,2)} offset:{bo}"))
        seq.append(lambda e: e.lds_op(f"ds_write_b64 v{V_T}, {vr(P4+2,2)} offset:{bo}"))
        seq.append(lambda e: e.lds_op(f"ds_read_b128 {vr(RD,4)}, v{V_FO} offset:{bo}", R(RD,4)))
        def st(e):
            e.need(R(RD,4))
            e(f"s_add_u32 s{S_T0}, s{S_STO}, {rt*16*2048 + t*64}")
            e(f"buffer_store_dwordx4 {vr(RD,4)}, v{V_FD}, s[{SRD_O}:{SRD_O+3}], s{S_T0} offen {p.out_flags}")
        return seq, [st]

    def progressive_end(l):
        pre = [wr_(0,1,0), wr_(0,1,1), xr_(0,0,1), wr_(1,1,0), wr_(1,1,1)]
        post = [wr_(0,2,0), wr_(0,2,1), xr_(0,0,2), wr_(0,3,0), wr_(0,3,1), xr_(0,0,3), wr_(1,2,0), wr_(1,2,1), wr_(1,3,0), wr_(1,3,1)]
        fills = merge(spread(pre, 0, 15), {p.b15_gap: [lambda e: e("s_barrier")]}, spread(post, p.b15_gap+1 if p.b15_gap >= 4 else 5, 15))
        step(e, p, 0, fills)
        blocks = [(rt,0) for rt in range(4)] + [(rt,1) for rt in range(4)]
        wb = [wr_(ct,s,h) for ct in (2,3) for s in (1,2,3) for h in range(2)]
        pend = []; late = []
        for bi,(rt,t) in enumerate(blocks):
            buf = bi % 2
            reads = []
            if bi + 1 < len(blocks): reads += [xr_(1-buf, blocks[bi+1][0], s) for s in (1,2,3)]
            if t == 0: reads += wb[3*rt:3*rt+3]
            work = pend + late
            late = []
            nw = len(work); k = 0
            seq = [(ct,s) for ct in (2*t, 2*t+1) for s in (1,2,3)]
            for m,(ct,s) in enumerate(seq):
                a = acc(rt,ct)
                e.need(R(WP(ct,s),4)+R(XP(buf,s),4))
                e.mfma(a, WP(ct,s), XP(buf,s), a)
                if m < len(reads): reads[m](e)
                if bi == 4 and m == 5 and l < 2: e("s_barrier")
                take = (nw*(m+1))//6 - (nw*m)//6 if m >= 0 else 0
                for _ in range(take): work[k](e); k += 1
            assert k == nw
            pend, st = block_epilogue(l, bi, rt, t)
            if l == 2:
                pend = pend; late_next = st
                pend = pend + []
                late = []
                blocks_late.append(late_next)
                if len(blocks_late) >= 2: late = blocks_late.pop(0)
        stamp(e,p,3+3*l)
        for f in pend: f(e)
        for f in late: f(e)
        while blocks_late:
            for f in blocks_late.pop(0): f(e)

    def classic_end(l):
        stamp(e,p,3+3*l)
        enc_point(e, p, f"k{l}")
        TE = FR + 32
        res = (lambda rt, ct: FR + (rt*4+ct)*2) if p.chain2 else globals()['res']
        e.after_mfma(R(ACC, 64))
        def body(flav):
            for rt in range(4):
                for t in range(2):
                    prs = []
                    for d in range(4):
                        ct = 2*t + d//2; dd = d % 2
                        k = (rt*2+t)*4+d
                        prs.append((TE + 2*(k % 16), res(rt,ct)+dd, acc(rt,ct)+2*dd, x0f(rt,ct)+2*dd))
                    for tm,r,a_,x in prs: e(f"v_pk_mul_f32 {vr(tm,2)}, {vr(x,2)}, {vr(a_,2)}")
                    for tm,r,a_,x in prs: e(f"v_cvt_pk_bf16_f32 v{r}, v{tm}, v{tm+1}")
                    r = res(rt,2*t)
                    so = S_STO if rt < 2 else S_STO2
                    sd = SRD_O if (l == 0 and p.x1_in_out) else SRD_WS
                    if not p.nostore: e(f"buffer_store_dwordx4 {vr(r,4)}, v{V_L16}, s[{sd}:{sd+3}], s{so} offen offset:{(rt%2)*2048+t*1024} {flav}")
                    k8 = rt*2 + t
                    if k8 >= p.dsw_lag:
                        kk = k8 - p.dsw_lag
                        e.lds_op(f"ds_write_b128 v{V_LW}, {vr(res(kk//2, 2*(kk%2)),4)} offset:{(kk//2)*2048+(kk%2)*1024}")
            for kk in range(max(8 - p.dsw_lag, 0), 8):
                e.lds_op(f"ds_write_b128 v{V_LW}, {vr(res(kk//2, 2*(kk%2)),4)} offset:{(kk//2)*2048+(kk%2)*1024}")
        if l in p.x_slow or p.force_fast is False:
            body("sc1")
        elif p.force_fast is True:
            body("")
        else:
            saved = list(e.lds)
            e(f"s_cmp_eq_u32 s{S_FAST}, 0\ns_cbranch_scc1 L_slow{l}")
            body("")
            e(f"s_branch L_join{l}")
            after = list(e.lds); e.lds = saved
            e.label(f"L_slow{l}")
            body("sc1")
            assert len(e.lds) == len(after)
            e.label(f"L_join{l}")

    def xc_load(e):
        e(f"v_and_b32 v{T}, 7, v{V_LANE}\nv_lshlrev_b32 v{T}, 2, v{T}\ns_lshl_b32 s{S_T0}, s{S_G}, 7\ns_add_u32 s{S_T0}, s{S_T0}, {WS_XC}")
        e.vm_op(f"buffer_load_dword v{T+1}, v{T}, s[{SRD_WS}:{SRD_WS+3}], s{S_T0} offen sc1", ("xc",0))
    def xc_test(e):
        e.vm_need([("xc",0)])
        e(f"v_cmp_eq_u32 vcc, s{S_XT}, v{T+1}")
        e("s_nop 1")
        e(f"s_cmp_eq_u64 vcc, -1\ns_cselect_b32 s{S_FAST}, 1, 0")
    def unpack4(b):
        def f(e):
            e.need(R(b+2,2))
            e(f"v_lshlrev_b32 v{b}, 16, v{b+2}\nv_and_b32 v{b+1}, s{S_MASK}, v{b+2}")
            e(f"v_lshlrev_b32 v{b+2}, 16, v{b+3}\nv_and_b32 v{b+3}, s{S_MASK}, v{b+3}")
        return f
    def addr_end2(l):
        TB = BIAS
        def f(e):
            if l == 0:
                e(f"s_lshl_b32 s{S_T0}, s{S_A}, 13\ns_lshl_b32 s{S_T0+1}, s{S_B2}, 14\ns_add_u32 s{S_T0+1}, s{S_T0+1}, s{S_T0}\nv_add_u32 v{V_LW}, s{S_T0+1}, v{V_L16}")
            if l == 2:
                e(f"v_and_b32 v{TB}, 15, v{V_LANE}\nv_lshrrev_b32 v{TB+1}, 4, v{V_LANE}")
                e(f"v_bfe_u32 v{TB+2}, v{TB}, 1, 2\nv_lshrrev_b32 v{TB+3}, 1, v{TB+1}\nv_xor_b32 v{TB+2}, v{TB+2}, v{TB+3}\nv_lshlrev_b32 v{TB+2}, 4, v{TB+2}")
                e(f"v_and_b32 v{TB+3}, 1, v{TB+1}\nv_lshlrev_b32 v{TB+3}, 3, v{TB+3}\nv_add_u32 v{TB+2}, v{TB+2}, v{TB+3}")
                e(f"v_lshlrev_b32 v{TB+3}, 6, v{TB}\nv_add_u32 v{TB+2}, v{TB+2}, v{TB+3}\ns_lshl_b32 s{S_T0}, s{S_WAVE}, 11")
                e(f"v_add_u32 v{V_LW}, s{S_T0}, v{TB+2}\nv_xor_b32 v{V_T}, 32, v{V_LW}")
                e(f"v_lshrrev_b32 v{TB}, 2, v{V_LANE}\nv_and_b32 v{TB+1}, 3, v{V_LANE}\nv_bfe_u32 v{TB+2}, v{TB}, 1, 2\nv_xor_b32 v{TB+2}, v{TB+2}, v{TB+1}")
                e(f"v_lshlrev_b32 v{TB+2}, 4, v{TB+2}\nv_lshlrev_b32 v{TB+3}, 6, v{TB}\nv_add_u32 v{TB+2}, v{TB+2}, v{TB+3}\nv_add_u32 v{V_FO}, s{S_T0}, v{TB+2}")
                e(f"v_lshlrev_b32 v{TB+2}, 11, v{TB}\nv_lshlrev_b32 v{TB+3}, 4, v{TB+1}\nv_add_u32 v{V_FD}, v{TB+2}, v{TB+3}")
                e(f"s_lshl_b32 s{S_STO}, s{S_G}, 18\ns_lshl_b32 s{S_T0}, s{S_A}, 17\ns_add_u32 s{S_STO}, s{S_STO}, s{S_T0}")
                e(f"s_lshl_b32 s{S_T0}, s{S_C}, 8\ns_add_u32 s{S_STO}, s{S_STO}, s{S_T0}\ns_lshl_b32 s{S_T0}, s{S_B2}, 7\ns_add_u32 s{S_STO}, s{S_STO}, s{S_T0}")
        return f

    def layers_chain2():
        unp = []; carry = []
        for l in range(3):
            blocks_late = []
            prog = l in p.prog_layers
            addA, addB = [], []
            for j in range(14 if prog else 16):
                n = 16*l + j; slot = n % 4; par = j % 2
                if p.c2_bal and carry:
                    fa = merge(spread(carry, 0, 15), spread(reads_B(slot), 4, 15))
                else:
                    fa = spread(reads_B(slot), 0, 15)
                carry = []
                ex = {}
                if l == 0 and j == 0: ex = merge(ex, {9:[op_xc], 13:[op_touch]} if use_xc else {9:[op_touch]})
                if l == 0 and j == 1:
                    items = [lambda e, ct=ct: e(f"v_xor_b32 v{T+ct}, {ct*32}, v{V_LW}") for ct in range(4)]
                    for rt in range(4):
                        for ct in range(4):
                            r = x0f(rt,ct)+2
                            items.append(lambda e, rt=rt, ct=ct, r=r: e.lds_op(f"ds_read_b64 {vr(r,2)}, v{T+ct} offset:{rt*2048}", R(r,2)))
                            unp.append(unpack4(x0f(rt,ct)))
                    ex = merge(ex, {0:items[0:2], 1:items[2:4]}, spread(items[4:8], 4, 7), spread(items[8:], 8, 15, dbl=4))
                if l == 0 and j >= 3 and unp:
                    ex = merge(ex, {9+2*i:[f] for i,f in enumerate(unp[:4])}); unp = unp[4:]
                if use_xc and l == 0 and j == 7: ex = merge(ex, {12:[xc_load]})
                if use_xc and l == 0 and j == 9: ex = merge(ex, {12:[xc_test]})
                if l > 0 and j == 0 and not p.pub_pre:
                    def pub(e, l=l):
                        e("s_waitcnt vmcnt(0)"); e.vm = []
                        stamp(e, p, 10+l)
                        e(f"buffer_store_dword v{V_FD}, v{V_FO}, s[{SRD_WS}:{SRD_WS+3}], 0 offen offset:{(l-1)*128}")
                        e(f"buffer_store_dword v{V_FD}, v{V_FO}, s[{SRD_WS}:{SRD_WS+3}], s{S_FB} offen offset:{(l-1)*128} sc1")
                    ex = merge(ex, {p.pub_gap: [pub]})
                if l > 0:
                    if j == 2:
                        br = bias_reads(l)
                        ex = merge(ex, {9:[br[0]], 10:[br[1], br[2]], 11:[br[3], br[4]]})
                    if j == 3:
                        ex = merge(ex, {9+2*i:[f] for i,f in enumerate(bias_unpack())})
                        for r in range(4):
                            for rt in range(4):
                                for ct in range(4):
                                    def ad(e, rt=rt, ct=ct, r=r):
                                        e.after_mfma([acc(rt,ct)+r])
                                        e(f"v_add_f32 v{acc(rt,ct)+r}, v{BIAS+ct*4+r}, v{acc(rt,ct)+r}")
                                    (addA if ct >= 2 else addB).append(ad)
                    elif j >= 4 and addA:
                        take = addA[:12]; addA = addA[12:]
                        ex = merge(ex, spread(take, 8, 13, dbl=6))
                if j == 12: ex = merge(ex, {10:[addr_end2(l)]})
                for (pl, pn, pg) in p.cpf:
                    if pn == n:
                        k = sum(1 for q in p.cpf[:p.cpf.index((pl,pn,pg))] if q[0] == pl)
                        def pf(e, pl=pl, k=k):
                            e(f"s_add_u32 s{S_T0}, s{S_PFC}, {pl*(2<<20) + k*1024}\ns_mov_b32 m0, {LDS_DUMMY}")
                            e("s_nop 0")
                            e(f"buffer_load_dwordx4 v{V_L16}, s[{SRD_W}:{SRD_W+3}], s{S_T0} offen lds")
                        ex = merge(ex, {12+pg:[pf]})
                half((0,1), par, merge(fa, ex), first=(l == 0 and j == 0))
                fb = {}
                barrier = not (l > 0 and j == 0) and n != 47
                start = 0
                if barrier:
                    def bar(e, n=n):
                        e.lds_all(); e("s_barrier")
                        if n in (17, 33): stamp(e, p, 5 + 3*(n//16 - 1))
                        enc_point(e, p, f"mid{n}")
                    fb = {p.c2_bar: [bar]}
                    start = p.c2_bar + 1
                if prog and j == 13:
                    fb = merge(fb, spread(frag_reads(0,0,(n+1)%4), start, 15))
                elif j < 15:
                    nx = reads_A(1-par, (n+1)%4)
                    if p.c2_bal:
                        carry = nx[12:]; nx = nx[:12]
                        fb = merge(fb, spread_even(nx, start, 15))
                    else:
                        fb = merge(fb, spread(nx, start, 15, dbl=max(0, len(nx) - (16 - start))))
                elif l < 2:
                    fb = merge(fb, spread(reads_A(0, (n+1)%4, only="w"), start, 15))
                if l > 0 and j >= 4 and addB:
                    take = addB[:6]; addB = addB[6:]
                    fb = merge(fb, spread(take, 8, 13))
                half((2,3), par, fb, first=(l == 0 and j == 0))
            assert not unp and not addA and not addB, (len(unp), len(addA), len(addB))
            if prog: progressive_end(l)
            else: classic_end(l)
            assert prog or l < 2
            if l < 2:
                e(f"s_add_u32 s{S_STO}, s{S_STO}, {WS_X2-WS_X1}\ns_add_u32 s{S_STO2}, s{S_STO2}, {WS_X2-WS_X1}")
                if l == 0:
                    e(f"s_lshl_b32 s{S_T0}, s{S_A}, 13\nv_add_u32 v{V_XA0}, s{S_T0}, v{V_L16}\nv_add_u32 v{V_XA1}, 1024, v{V_XA0}")
                e.lds_all()
                stamp(e,p,4+3*l)
                e("s_barrier")
                assert not prog
                for f in reads_A(0, 0, only="x"): f(e)
                e("s_nop 1")
            else:
                stamp(e,p,4+3*l)
    blocks_late = []
    if p.chain2:
        layers_chain2()
    else:
        for l in range(3):
            add_q = []
            blocks_late = []
            prog = l in p.prog_layers
            nj = 14 if prog else 16
            for j in range(nj):
                if p.exp_loop and l == 1:
                    if j == 2:
                        e("s_mov_b32 s91, 3"); e.label("L_exploop")
                    if 6 <= j <= 13:
                        if j == 6: e("s_sub_u32 s91, s91, 1\ns_cmp_lg_u32 s91, 0\ns_cbranch_scc1 L_exploop")
                        continue
                n = 16*l + j; slot = n % 4
                CUR['nowait'] = bool(p.exp_nowait) and l == 1 and 2 <= j <= 13
                CUR['b128'] = p.exp_b128 and l == 1 and 2 <= j <= 12
                fills = spread(frag_reads(1,1,slot), 0, 15, dbl=p.dbl0) if p.span0 is None else spread_even(frag_reads(1,1,slot), 0, p.span0)
                extra = {}
                if l == 0 and j == 0: extra = merge(extra, {4:[op_xc], 10:[op_touch]} if use_xc else {6:[op_touch]})
                if p.tlbw is not None and l == 0 and j == p.tlbw:
                    def tw(e, sd, add):
                        e(f"s_add_u32 s{S_T0}, s{S_STO}, {add}\ns_mov_b32 m0, {LDS_DUMMY}")
                        e(f"v_and_b32 v{T+2}, 0, v{V_LANE}")
                        e(f"buffer_load_dword v{T+2}, s[{sd}:{sd+3}], s{S_T0} offen sc1 lds")
                    extra = merge(extra, {6:[lambda e: tw(e, SRD_O if p.x1_in_out else SRD_WS, 0)], 12:[lambda e: tw(e, SRD_WS, WS_X2)]})
                if use_xc and l == 0 and j == 6:
                    def xc_load(e):
                        e(f"v_and_b32 v{T}, 7, v{V_LANE}\nv_lshlrev_b32 v{T}, 2, v{T}\ns_lshl_b32 s{S_T0}, s{S_G}, 7\ns_add_u32 s{S_T0}, s{S_T0}, {WS_XC}")
                        e.vm_op(f"buffer_load_dword v{T+1}, v{T}, s[{SRD_WS}:{SRD_WS+3}], s{S_T0} offen sc1", ("xc",0))
                    extra = merge(extra, {13:[xc_load]})
                if use_xc and l == 0 and j == 8:
                    def xc_test(e):
                        e.vm_need([("xc",0)])
                        e(f"v_cmp_eq_u32 vcc, s{S_XT}, v{T+1}")
                        e("s_nop 1")
                        e(f"s_cmp_eq_u64 vcc, -1\ns_cselect_b32 s{S_FAST}, 1, 0")
                    extra = merge(extra, {13:[xc_test]})
                if l == 0 and j == 1:
                    items = []
                    for ct in range(4):
                        items.append(lambda e, ct=ct: e(f"v_xor_b32 v{T+ct}, {ct*32}, v{V_LW}"))
                    for rt in range(4):
                        for ct in range(4):
                            r = res(rt,ct)
                            items.append(lambda e, rt=rt, ct=ct, r=r: e.lds_op(f"ds_read_b64 {vr(r,2)}, v{T+ct} offset:{rt*2048}", R(r,2)))
                    k=0
                    for g in range(16):
                        extra[g] = items[k:k+2] if g < 4 else items[k:k+1]
                        k += len(extra[g])
                    assert k == len(items)
                    for rt in range(4):
                        for ct in range(4):
                            for d in range(2):
                                def f(e, rt=rt, ct=ct, d=d):
                                    r = res(rt,ct)+d; x = x0f(rt,ct)+2*d
                                    e.need([r])
                                    e(f"v_lshlrev_b32 v{x}, 16, v{r}\nv_and_b32 v{x+1}, s{S_MASK}, v{r}")
                                unpack_q.append(f)
                if l > 0 and j == 0 and not p.pub_pre:
                    def pub(e, l=l):
                        e("s_waitcnt vmcnt(0)"); e.vm = []
                        stamp(e, p, 10+l)
                        e(f"buffer_store_dword v{V_FD}, v{V_FO}, s[{SRD_WS}:{SRD_WS+3}], 0 offen offset:{(l-1)*128}")
                        e(f"buffer_store_dword v{V_FD}, v{V_FO}, s[{SRD_WS}:{SRD_WS+3}], s{S_FB} offen offset:{(l-1)*128} sc1")
                    extra = merge(extra, {p.pub_gap: [pub]})
                if l > 0 and not (p.exp_loop and l == 1):
                    if j == 2:
                        br = bias_reads(l)
                        extra = merge(extra, {11:[br[0]], 12:[br[1], br[2]], 13:[br[3], br[4]]})
                    if j == 3:
                        bu = bias_unpack()
                        extra = merge(extra, {12+i:[f] for i,f in enumerate(bu)})
                        for r in range(4):
                            for m,(rt,ct) in enumerate(order):
                                add_q.append((m, lambda e, rt=rt, ct=ct, r=r: e(f"v_add_f32 v{acc(rt,ct)+r}, v{BIAS+ct*4+r}, v{acc(rt,ct)+r}")))
                    elif j >= 4 and add_q:
                        extra = merge(extra, place_adds(add_q, [12,12,13,13,14,14,15,15]))
                if l == 0 and j >= 3 and unpack_q:
                    items = unpack_q[:4]; unpack_q = unpack_q[4:]
                    extra = merge(extra, {12+i:[it] for i,it in enumerate(items)})
                if j == 12:
                    def addr_end(e, l=l):
                        if l == 0:
                            e(f"s_lshl_b32 s{S_T0}, s{S_A}, 13\ns_lshl_b32 s{S_T0+1}, s{S_B2}, 14\ns_add_u32 s{S_T0+1}, s{S_T0+1}, s{S_T0}\nv_add_u32 v{V_LW}, s{S_T0+1}, v{V_L16}")
                        if l == 2:
                            e(f"v_and_b32 v{TMP}, 15, v{V_LANE}\nv_lshrrev_b32 v{TMP+1}, 4, v{V_LANE}")
                            e(f"v_bfe_u32 v{TMP+2}, v{TMP}, 1, 2\nv_lshrrev_b32 v{TMP+3}, 1, v{TMP+1}\nv_xor_b32 v{TMP+2}, v{TMP+2}, v{TMP+3}\nv_lshlrev_b32 v{TMP+2}, 4, v{TMP+2}")
                            e(f"v_and_b32 v{TMP+3}, 1, v{TMP+1}\nv_lshlrev_b32 v{TMP+3}, 3, v{TMP+3}\nv_add_u32 v{TMP+2}, v{TMP+2}, v{TMP+3}")
                            e(f"v_lshlrev_b32 v{TMP+3}, 6, v{TMP}\nv_add_u32 v{TMP+2}, v{TMP+2}, v{TMP+3}\ns_lshl_b32 s{S_T0}, s{S_WAVE}, 11")
                            e(f"v_add_u32 v{V_LW}, s{S_T0}, v{TMP+2}\nv_xor_b32 v{V_T}, 32, v{V_LW}")
                            e(f"v_lshrrev_b32 v{TMP}, 2, v{V_LANE}\nv_and_b32 v{TMP+1}, 3, v{V_LANE}\nv_bfe_u32 v{TMP+2}, v{TMP}, 1, 2\nv_xor_b32 v{TMP+2}, v{TMP+2}, v{TMP+1}")
                            e(f"v_lshlrev_b32 v{TMP+2}, 4, v{TMP+2}\nv_lshlrev_b32 v{TMP+3}, 6, v{TMP}\nv_add_u32 v{TMP+2}, v{TMP+2}, v{TMP+3}\nv_add_u32 v{V_FO}, s{S_T0}, v{TMP+2}")
                            e(f"v_lshlrev_b32 v{TMP+2}, 11, v{TMP}\nv_lshlrev_b32 v{TMP+3}, 4, v{TMP+1}\nv_add_u32 v{V_FD}, v{TMP+2}, v{TMP+3}")
                            e(f"s_lshl_b32 s{S_STO}, s{S_G}, 18\ns_lshl_b32 s{S_T0}, s{S_A}, 17\ns_add_u32 s{S_STO}, s{S_STO}, s{S_T0}")
                            e(f"s_lshl_b32 s{S_T0}, s{S_C}, 8\ns_add_u32 s{S_STO}, s{S_STO}, s{S_T0}\ns_lshl_b32 s{S_T0}, s{S_B2}, 7\ns_add_u32 s{S_STO}, s{S_STO}, s{S_T0}")
                    extra = merge(extra, {12:[addr_end]})
                step(e, p, 0, merge(fills, extra), first=(l == 0 and j == 0))
                fills = {}
                barrier = not (l > 0 and j == 0) and n != 47
                start = 0
                if p.cdma and j == 1 and l < 2:
                    def cd_addr(e, l=l):
                        TT = TMP if l > 0 else FR
                        e(f"v_lshrrev_b32 v{T+1}, 4, v{V_LANE}\nv_bfe_u32 v{T+2}, v{V_LANE}, 1, 3\nv_xor_b32 v{T+2}, v{T+2}, v{T+1}\nv_lshlrev_b32 v{T+2}, 5, v{T+2}")
                        e(f"v_and_b32 v{T+3}, 1, v{V_LANE}\nv_lshlrev_b32 v{T+3}, 4, v{T+3}\nv_add_u32 v{T+2}, v{T+2}, v{T+3}\nv_lshlrev_b32 v{T+1}, 11, v{T+1}\nv_add_u32 v{T+2}, v{T+2}, v{T+1}")
                        e(f"v_xor_b32 v{T+2}, 128, v{T+2}\nv_add_u32 v{T+3}, {(24 if l == 0 else 12)*2048}, v{T+2}")
                    fills = merge(fills, {8:[cd_addr]})
                seen = {}
                for (pl, pn, pg) in p.cpf:
                    if pn == n:
                        k = seen.get(pl, sum(1 for q in p.cpf[:p.cpf.index((pl,pn,pg))] if q[0] == pl)); seen[pl] = k + 1
                        def pf(e, pl=pl, k=k):
                            e(f"s_add_u32 s{S_T0}, s{S_PFC}, {pl*(2<<20) + k*1024}\ns_mov_b32 m0, {LDS_DUMMY}")
                            e("s_nop 0")
                            e(f"buffer_load_dwordx4 v{V_L16}, s[{SRD_W}:{SRD_W+3}], s{S_T0} offen lds")
                        fills = merge(fills, {pg:[pf]})
                if barrier and cdma_stage(p, n+3):
                    m = n + 3; lm, jm = divmod(m, 16)
                    def cd_prep(e, m=m, lm=lm, jm=jm):
                        e(f"s_bfe_u32 s{S_KC}, s{S_TAB+jm//8}, {(4 << 16) | (4*(jm%8))}\ns_lshl_b32 s{S_SW}, s{S_KC}, 17")
                        e(f"s_add_u32 s{S_SW}, s{S_SW}, s{S_WB0 if lm == 0 else S_WB1}")
                        if lm > 0: e(f"s_add_u32 s{S_SW}, s{S_SW}, {lm*(2<<20)}")
                        e(f"s_add_u32 m0, s{S_LX}, {(m % 4)*16384}")
                    def cd_issue(e, m=m):
                        e.vm_op(f"buffer_load_dwordx4 v{T+3}, s[{SRD_W}:{SRD_W+3}], s{S_SW} offen lds", ("cw", m))
                    fills = merge(fills, {0:[cd_prep], p.cd_gap:[cd_issue]})
                if barrier:
                    def bar(e, n=n):
                        e.vm_need([("cw", n+1)])
                        if CUR.get('nowait') and p.exp_nowait == 2: e.lds = []
                        e.lds_all()
                        if n in p.barw: e("s_memtime s[92:93]")
                        e("s_barrier")
                        if n in p.barw:
                            e(f"s_memtime s[94:95]\ns_waitcnt lgkmcnt(0)\ns_sub_u32 s94, s94, s92\nv_writelane_b32 v15, s94, {16+p.barw.index(n)}")
                        if n in (17, 33): stamp(e, p, 5 + 3*(n//16 - 1))
                        enc_point(e, p, f"mid{n}")
                    fills = merge(fills, {p.bar_gap: [bar]})
                    start = p.bar_gap + 1
                if j < 15:
                    if p.span0 is None: fills = merge(fills, spread(frag_reads(0,0,(n+1)%4), start, 15, dbl=p.dbl if barrier else 0))
                    else: fills = merge(fills, spread_even(frag_reads(0,0,(n+1)%4), start, 15 if barrier else p.span0))
                elif l < 2:
                    fills = merge(fills, spread(frag_reads(0,0,(n+1)%4, only="w"), start, 15, dbl=2))
                if l > 0 and j >= 4 and add_q:
                    fills = merge(fills, place_adds(add_q, [0,1,2,5,6,7]))
                if l == 0 and j >= 3 and unpack_q:
                    items = unpack_q[:2]; unpack_q = unpack_q[2:]
                    fills = merge(fills, {i:[it] for i,it in enumerate(items)})
                step(e, p, 1, fills)
            assert not unpack_q and not add_q, (len(unpack_q), len(add_q))
            if prog: progressive_end(l)
            else: classic_end(l)
            assert prog or l < 2
            if l < 2:
                e(f"s_add_u32 s{S_STO}, s{S_STO}, {WS_X2-WS_X1}\ns_add_u32 s{S_STO2}, s{S_STO2}, {WS_X2-WS_X1}")
                if l == 0:
                    e(f"s_lshl_b32 s{S_T0}, s{S_A}, 13\nv_add_u32 v{V_XA0}, s{S_T0}, v{V_L16}\nv_add_u32 v{V_XA1}, 1024, v{V_XA0}")
                if p.pub_pre:
                    e("s_waitcnt vmcnt(0)")
                    stamp(e, p, 11+l)
                    e(f"buffer_store_dword v{V_FD}, v{V_FO}, s[{SRD_WS}:{SRD_WS+3}], 0 offen offset:{l*128}")
                    e(f"buffer_store_dword v{V_FD}, v{V_FO}, s[{SRD_WS}:{SRD_WS+3}], s{S_FB} offen offset:{l*128} sc1")
                e.lds_all()
                stamp(e,p,4+3*l)
                e("s_barrier")
                for f in frag_reads(0,0,0, only=None if prog else "x"): f(e)
                e("s_nop 1")
            else:
                stamp(e,p,4+3*l)
    if p.stamps:
        e("s_waitcnt vmcnt(0)")
        stamp(e,p,15)
        e("v_mov_b32 v60, v15")
        stamp_out(e,p,60)
    if p.enc:
        what, M, wg = p.enc
        if wg != "all": e(f"s_cmp_eq_u32 s2, {wg}\ns_cbranch_scc0 L_encd")
        e(f"s_cmp_eq_u32 s{S_WAVE}, 0\ns_cbranch_scc0 L_encd")
        e("s_waitcnt vmcnt(0)\ns_memrealtime s[64:65]\ns_waitcnt lgkmcnt(0)")
        if what == "end": e("s_mov_b32 s66, s64")
        e(f"s_sub_u32 s66, s66, s68\ns_mul_i32 s66, s66, {M}")
        e.label("L_encs")
        e("s_memrealtime s[62:63]\ns_waitcnt lgkmcnt(0)\ns_sub_u32 s62, s62, s64\ns_cmp_lt_u32 s62, s66\ns_cbranch_scc1 L_encs")
        e.label("L_encd")
    e("s_endpgm")

def gen_loader(e, p):
    e.label("L_loader")
    e.lds = []; e.vm = []
    XV0=1; XV1=5; WV0=6; WV1=10; T=14
    e(f"s_sub_u32 s{S_A}, s{S_WAVE}, 4")
    e("v_and_b32 v0, 63, v0")
    e(f"v_lshrrev_b32 v{T}, 3, v0\nv_and_b32 v{T+1}, 7, v0\nv_lshrrev_b32 v{T+2}, 4, v0")
    e(f"v_xor_b32 v{T+3}, v{T+1}, v{T+2}\nv_lshlrev_b32 v{T+3}, 4, v{T+3}\nv_lshlrev_b32 v{T+4}, 11, v{T}\nv_add_u32 v{XV0}, v{T+3}, v{T+4}")
    e(f"v_xor_b32 v{T+3}, 64, v{XV0}")
    e(f"v_add_u32 v{XV0+1}, {8*2048-1024}, v{T+3}\nv_add_u32 v{XV0+2}, {16*2048-2048}, v{XV0}\nv_add_u32 v{XV0+3}, {24*2048-3072}, v{T+3}")
    e(f"v_bfe_u32 v{T+3}, v0, 1, 3\nv_xor_b32 v{T+3}, v{T+3}, v{T+2}\nv_lshlrev_b32 v{T+3}, 5, v{T+3}")
    e(f"v_and_b32 v{T+4}, 1, v0\nv_lshlrev_b32 v{T+4}, 4, v{T+4}\nv_add_u32 v{T+3}, v{T+3}, v{T+4}")
    e(f"v_lshlrev_b32 v{T+4}, 11, v{T+2}\nv_add_u32 v{WV0}, v{T+3}, v{T+4}")
    e(f"v_xor_b32 v{T+3}, 128, v{WV0}")
    e(f"v_add_u32 v{WV0+1}, {8*2048-1024}, v{T+3}\nv_add_u32 v{WV0+2}, {16*2048-2048}, v{WV0}\nv_add_u32 v{WV0+3}, {24*2048-3072}, v{T+3}")
    e(f"s_lshl_b32 s{S_XB0}, s{S_G}, 18\ns_lshl_b32 s{S_T0}, s{S_A}, 16\ns_add_u32 s{S_XB0}, s{S_XB0}, s{S_T0}")
    e(f"s_lshl_b32 s{S_LX}, s{S_A}, 12")
    e(f"s_lshr_b32 s{S_T0}, s{S_A}, 1\ns_lshl_b32 s{S_T0}, s{S_T0}, 5\ns_and_b32 s{S_T0+1}, s{S_A}, 1\ns_lshl_b32 s{S_T0+1}, s{S_T0+1}, 2\ns_add_u32 s{S_T0}, s{S_T0}, s{S_T0+1}")
    e(f"s_lshl_b32 s{S_WB0}, s{S_T0}, 11\ns_lshl_b32 s{S_T0+1}, s{S_C}, 8\ns_add_u32 s{S_WB0}, s{S_WB0}, s{S_T0+1}")
    tab_ready = [False]
    def kc_slow(j):
        if j < 2 or not p.mrot:
            e(f"s_lshl_b32 s{S_KC}, s{S_C}, 1\ns_add_u32 s{S_KC}, s{S_KC}, {j}\ns_and_b32 s{S_KC}, s{S_KC}, 15")
        else:
            e(f"s_add_u32 s{S_KC}, s{S_OFF}, {j-2}\ns_cmp_ge_u32 s{S_KC}, 14\ns_cselect_b32 s{S_T0+5}, 14, 0\ns_sub_u32 s{S_KC}, s{S_KC}, s{S_T0+5}")
            e(f"s_lshl_b32 s{S_T0+5}, s{S_C}, 1\ns_add_u32 s{S_KC}, s{S_KC}, s{S_T0+5}\ns_add_u32 s{S_KC}, s{S_KC}, 2\ns_and_b32 s{S_KC}, s{S_KC}, 15")
    def build_tab():
        e(f"s_mov_b32 s{S_TAB}, 0\ns_mov_b32 s{S_TAB+1}, 0")
        for j in range(16):
            kc_slow(j)
            e(f"s_lshl_b32 s{S_KC}, s{S_KC}, {4*(j%8)}\ns_or_b32 s{S_TAB+j//8}, s{S_TAB+j//8}, s{S_KC}")
        tab_ready[0] = True
    def kc(j):
        if tab_ready[0]: e(f"s_bfe_u32 s{S_KC}, s{S_TAB+j//8}, {(4 << 16) | (4*(j%8))}")
        else: kc_slow(j)
    def need_mask(dst):
        e(f"s_lshr_b32 s{dst}, s{S_KC}, 1\ns_lshl_b32 s{dst}, s{dst}, 2\ns_and_b32 s{S_T0+5}, s{S_KC}, 1\ns_add_u32 s{dst}, s{dst}, s{S_T0+5}")
        e(f"s_lshl_b32 s{dst}, 5, s{dst}")
    def ensure(n, also=None):
        l = n // 16
        if p.nosync:
            kc(n % 16); return
        if also is None:
            e(f"s_cmp_eq_u32 s{S_RDY}, -1\ns_cbranch_scc1 L_ok{n}")
        if also is not None:
            kc(also % 16); need_mask(S_NEED2)
        kc(n % 16); need_mask(S_NEED)
        if also is not None: e(f"s_or_b32 s{S_NEED}, s{S_NEED}, s{S_NEED2}")
        e(f"s_and_b32 s{S_T0+5}, s{S_RDY}, s{S_NEED}\ns_cmp_eq_u32 s{S_T0+5}, s{S_NEED}\ns_cbranch_scc1 L_ok{n}")
        e(f"s_mov_b32 s{S_CNT}, 0")
        e.label(f"L_poll{n}")
        e(f"s_cmp_ge_u32 s{S_CNT}, {p.a_only}\ns_cselect_b32 s{S_T0+5}, 1, 0\ns_and_b32 s{S_T0+5}, s{S_T0+5}, s{S_CNT}\ns_mul_i32 s{S_PO}, s{S_T0+5}, {WS_FLAGB-WS_FLAG}")
        e(f"buffer_load_dword v{T+2}, v{T+1}, s[{SRD_WS}:{SRD_WS+3}], s{S_PO} offen offset:{(l-1)*128} sc1")
        e("s_waitcnt vmcnt(0)")
        e(f"v_cmp_eq_u32 vcc, s{S_TAG}, v{T+2}")
        e("s_nop 1")
        e(f"s_or_b32 s{S_RDY}, s{S_RDY}, vcc_lo")
        e(f"s_and_b32 s{S_T0+5}, s{S_RDY}, s{S_NEED}\ns_cmp_eq_u32 s{S_T0+5}, s{S_NEED}\ns_cbranch_scc1 L_ok{n}")
        e(f"s_add_u32 s{S_CNT}, s{S_CNT}, 1\ns_cmp_lg_u32 s{S_CNT}, {p.poll_max}")
        e(f"s_cbranch_scc1 L_poll{n}")
        e.label(f"L_ok{n}")
    def poll_async(l, tag):
        if p.nosync: return
        e.vm_op(f"buffer_load_dword v{T+5}, v{T+1}, s[{SRD_WS}:{SRD_WS+3}], 0 offen offset:{(l-1)*128} sc1", tag)
    def poll_collect(tag):
        if p.nosync: return
        e.vm_need([tag])
        e(f"v_cmp_eq_u32 vcc, s{S_TAG}, v{T+5}")
        e("s_nop 1")
        e(f"s_or_b32 s{S_RDY}, s{S_RDY}, vcc_lo")
    def prep_x(n, checked=False, so=None):
        l, j = divmod(n, 16); so = so or S_SO
        if l > 0 and not checked:
            ensure(n); kc(j)
        if l == 0:
            e(f"s_lshl_b32 s{so}, s{S_KC}, 7\ns_add_u32 s{so}, s{so}, s{S_XB0}")
        else:
            e(f"s_lshl_b32 s{so}, s{S_KC}, 14\ns_add_u32 s{so}, s{so}, s{S_XBL}")
    def issue_x(n, so=None, mid=None):
        l, j = divmod(n, 16); slot = n % 4; so = so or S_SO
        e(f"s_add_u32 m0, s{S_LX}, {LDS_X + slot*16384}")
        e("s_nop 0")
        for ee in range(4 if not (p.exp_nox and l == 1 and j >= 5) else p.exp_nox - 1):
            if l == 0: e.vm_op(f"buffer_load_dwordx4 v{XV0+ee}, s[{SRD_X}:{SRD_X+3}], s{so} offen offset:{ee*1024} {p.x0f01 if n < 2 else p.x0f} lds", ("x",n))
            else:
                sd = SRD_O if (l == 1 and p.x1_in_out) else SRD_WS
                if p.exp_vgpr and l == 1 and j >= 5:
                    e.vm_op(f"buffer_load_dwordx4 v[{64+4*ee}:{67+4*ee}], v{XV1}, s[{sd}:{sd+3}], s{so} offen offset:{ee*1024} {p.x_flags}", ("x",n))
                elif p.tid:
                    st_ = SRD_T1 if l == 1 else SRD_T2
                    e.vm_op(f"buffer_load_dwordx4 off, s[{st_}:{st_+3}], s{so} offset:{ee*1024} {p.x_flags} lds", ("x",n))
                else:
                    fl = p.x_flags + (" nt" if ((l == 2 and j >= p.x2_last) or (l == 1 and j >= p.x1_last)) else "")
                    e.vm_op(f"buffer_load_dwordx4 v{XV1}, s[{sd}:{sd+3}], s{so} offen offset:{ee*1024} {fl} lds", ("x",n))
            if ee == 0 and mid: mid()
    def prep_w(n, sreg=None):
        l, j = divmod(n, 16); sreg = sreg or S_SW
        kc(j)
        if l > 0 and j == 0:
            e(f"s_add_u32 s{S_WBL}, s{S_WB1}, {0 if p.wsame else l*(2<<20)}")
        e(f"s_lshl_b32 s{sreg}, s{S_KC}, 17\ns_add_u32 s{sreg}, s{sreg}, s{S_WB0 if l == 0 else S_WBL}")
    m0_now = [None]
    def set_m0(val):
        if m0_now[0] == val:
            m0_now[0] = None; return
        e(f"s_add_u32 m0, s{S_LX}, {val}")
        e("s_nop 0")
    def preset_m0(val):
        e(f"s_add_u32 m0, s{S_LX}, {val}"); m0_now[0] = val
    def issue_w(n, sreg=None, mid=None):
        l, j = divmod(n, 16); slot = n % 4; sreg = sreg or S_SW
        set_m0(LDS_W + slot*16384)
        wv = WV0 if l == 0 else WV1
        for ee in range(3 if cdma_stage(p, n) else 4):
            e.vm_op(f"buffer_load_dwordx4 v{wv+ee}, s[{SRD_W}:{SRD_W+3}], s{sreg} offen offset:{ee*1024} {(p.w0lead if 2 <= n <= 5 and p.w0lead else p.w0f) if n < 16 else ''} lds", ("w",n))
            if ee == 0 and mid: mid()
    def dma_x(n, checked=False):
        kc(n % 16)
        prep_x(n, checked); issue_x(n)
    def dma_w(n):
        prep_w(n); issue_w(n)
    def plan(n):
        l, j = divmod(n, 16)
        sw, sw2, so = (S_SW, S_SWB, S_SO) if n % 2 == 0 else (S_SW2, S_SWB2, S_SO2)
        prog = l in p.prog_layers
        if p.dw == 4:
            xs = [n+3] if j <= 12 else []
            last_w = 47 if l == 2 else (16*l + 17 if prog else 16*l + 19)
            wsn = [m for m in ([n+3, n+4] if (l > 0 and j == 1) else [n+4]) if m <= last_w]
            def prep():
                for m, reg in zip(wsn, (sw, sw2)): prep_w(m, reg)
                for m in xs:
                    kc(m % 16); prep_x(m, so=so)
            def issue(mid):
                done = [False]
                def mid1():
                    if not done[0]:
                        done[0] = True
                        if mid: mid()
                if len(wsn) == 2: issue_w(wsn[0], sw, mid1)
                for m in xs: issue_x(m, so, mid1)
                if wsn: issue_w(wsn[-1], (sw, sw2)[len(wsn)-1], mid1)
                mid1()
            return (prep, issue)
        if j == 13:
            if l == 2: return (lambda: None, lambda mid: mid and mid())
            return (lambda: (prep_w(n+3, sw), prep_w(n+4, sw2)), lambda mid: (issue_w(n+3, sw, mid), issue_w(n+4, sw2)))
        if j in (14, 15):
            if l == 2: return (lambda: None, lambda mid: mid and mid())
            return (lambda: prep_w(n+4, sw), lambda mid: issue_w(n+4, sw, mid))
        m = n + 3
        return (lambda: (prep_w(m, sw), prep_x(m, so=so)), lambda mid: (issue_w(m, sw, mid), issue_x(m, so)))

    e("s_waitcnt lgkmcnt(0)")
    srd(e, SRD_X, 4, 8<<20); srd(e, SRD_W, 6, 6<<20)
    if p.stamps: e("v_mov_b32 v60, 0\nv_writelane_b32 v60, s66, 0\nv_writelane_b32 v60, s68, 32")
    def w0_touch(k0, k1):
        if k0 == 0:
            e(f"s_lshl_b32 s{S_T0}, s2, 13\ns_lshl_b32 s{S_T0+1}, s{S_A}, 11\ns_add_u32 s{S_T0}, s{S_T0}, s{S_T0+1}")
            e(f"s_add_u32 s{S_PB}, s6, s{S_T0}\ns_addc_u32 s{S_PB+1}, s7, 0")
        for k in range(k0, k1): e(f"s_load_dword s{80 + k % 16}, s[{S_PB}:{S_PB+1}], {k * 64}")
    def lpf():
        e(f"s_lshl_b32 s{S_T0}, s2, 13\ns_lshl_b32 s{S_T0+1}, s{S_A}, 11\ns_add_u32 s{S_T0}, s{S_T0}, s{S_T0+1}")
        e(f"v_lshlrev_b32 v{XV1}, 4, v0\ns_mov_b32 m0, {LDS_DUMMY}")
        e("s_nop 0")
        e.vm_op(f"buffer_load_dwordx4 v{XV1}, s[{SRD_W}:{SRD_W+3}], s{S_T0} offen lds", ("pf",0))
        e(f"s_add_u32 s{S_T0}, s{S_T0}, 1024")
        e.vm_op(f"buffer_load_dwordx4 v{XV1}, s[{SRD_W}:{SRD_W+3}], s{S_T0} offen lds", ("pf",0))
    if p.w0pf and p.w0pf_pos == 0: w0_touch(0, p.w0pf)
    if p.lpf0 == 0: lpf()
    dma_x(0); dma_w(0)
    if p.lpf0 == 1: lpf()
    if p.w0pf and p.w0pf_pos == 1: w0_touch(0, p.w0pf)
    srd(e, SRD_WS, 40, WS_SIZE); srd(e, SRD_B, 44, 6144); srd(e, SRD_O, 42, 8<<20)
    if p.tid:
        for b, lo in ((SRD_T1, 42 if p.x1_in_out else 40), (SRD_T2, 40)):
            e(f"s_mov_b32 s{b}, s{lo}\ns_and_b32 s{b+1}, s{lo+1}, 0xffff\ns_or_b32 s{b+1}, s{b+1}, 0x100000\ns_mov_b32 s{b+2}, 64\ns_mov_b32 s{b+3}, 0x00800000")
    e(f"s_min_u32 s{S_T0}, s{S_A}, 2\ns_lshl_b32 s{S_T0+1}, s{S_T0}, 8\ns_add_u32 m0, s{S_T0+1}, {LDS_B}")
    e(f"s_lshl_b32 s{S_T0+1}, s{S_T0}, 11\ns_lshl_b32 s{S_T0+2}, s{S_C}, 8\ns_add_u32 s{S_T0+1}, s{S_T0+1}, s{S_T0+2}")
    e(f"v_lshlrev_b32 v{T}, 2, v0")
    e.vm_op(f"buffer_load_dword v{T}, s[{SRD_B}:{SRD_B+3}], s{S_T0+1} offen lds", ("b",0))
    dma_x(1); dma_w(1)
    if p.lpf0 == 2: lpf()
    e(f"v_lshlrev_b32 v{XV1}, 4, v0")
    e(f"v_xor_b32 v{T+3}, 128, v{WV0}")
    e(f"v_mov_b32 v{WV1}, v{WV0}\nv_add_u32 v{WV1+1}, {4*2048-1024}, v{T+3}\nv_add_u32 v{WV1+2}, {8*2048-2048}, v{WV0}\nv_add_u32 v{WV1+3}, {12*2048-3072}, v{T+3}")
    e(f"s_lshl_b32 s{S_XB1}, s{S_G}, 18\ns_add_u32 s{S_XB1}, s{S_XB1}, s{S_LX}")
    e(f"s_lshl_b32 s{S_WB1}, s{S_A}, 15\ns_lshl_b32 s{S_T0+1}, s{S_C}, 8\ns_add_u32 s{S_WB1}, s{S_WB1}, s{S_T0+1}")
    e(f"s_lshr_b32 s{S_T0}, s{S_G}, 3\ns_lshl_b32 s{S_T0}, s{S_T0}, 2\ns_lshr_b32 s{S_OFF}, {sum(o << (4*i) for i,o in enumerate(p.moff))}, s{S_T0}\ns_and_b32 s{S_OFF}, s{S_OFF}, 15")
    e(f"s_lshl_b32 s{S_T0}, s{S_G}, 8\ns_add_u32 s{S_T0}, s{S_T0}, {WS_FLAG}")
    e(f"v_and_b32 v{T+1}, 31, v0\nv_lshlrev_b32 v{T+1}, 2, v{T+1}\nv_add_u32 v{T+1}, s{S_T0}, v{T+1}")
    build_tab()
    stamp(e,p,1,LSR)
    e.vm_need([("x",0),("w",0),("b",0)])
    stamp(e,p,2,LSR)
    e("s_barrier")
    if p.dw == 4:
        dma_x(2); dma_w(2); dma_w(3)
    else:
        dma_w(2); dma_x(2)
    if p.w0pf and p.w0pf < 32: w0_touch(p.w0pf, min(32, p.w0pf + 12))
    prepped = set()
    e.pace = p.exp_pace
    for l in range(3):
        prog = l in p.prog_layers
        for j in range(14 if prog else 16):
            n = 16*l + j
            if l > 0 and j == 0: continue
            if n == 47: continue
            prep, issue = plan(n)
            polled = l > 0 and 1 <= j <= p.apoll
            if n not in prepped and not polled: prep()
            e.vm_need([("x",n+1),("w",n+1)])
            if polled:
                poll_collect(("ap", n-1)); prep()
            if n in (17,33): stamp(e,p,5+3*(n//16-1),LSR)
            if p.stage_stamps is not False and n//16 == p.stage_stamps: stamp(e,p,16+n%16,LSR)
            if p.m0pre and p.dw == 3:
                first_w = (n+3 if j <= 13 else n+4) if not (l == 2 and j >= 13) else None
                if first_w is not None and first_w <= 47: preset_m0(LDS_W + (first_w % 4)*16384)
            if n in p.barw: e("s_memtime s[92:93]")
            e("s_barrier")
            if n in p.barw:
                e(f"s_memtime s[94:95]\ns_waitcnt lgkmcnt(0)\ns_sub_u32 s94, s94, s92\nv_writelane_b32 v60, s94, {16+p.barw.index(n)}")
            for _ in range(p.ldelay): e("s_nop 15")
            if l > 0 and 1 <= j < p.apoll: poll_async(l, ("ap", n))
            def mid(n=n, l=l, j=j):
                if n == 0:
                    e(f"s_lshl_b32 s{S_T0}, s{S_G}, 7\ns_add_u32 s{S_T0}, s{S_T0}, {WS_V}")
                    e(f"s_load_dword s{S_TAG}, s[40:41], s{S_T0}")
                if n == 12:
                    e("s_waitcnt lgkmcnt(0)")
                    e(f"s_add_u32 s{S_TAG}, s{S_TAG}, {TAGK}")
                if p.lspf and l < 2:
                    ntouch = 2048 // p.lspf
                    ls, per = p.lspf_start, p.lspf_per
                    k0 = (j - ls) * per
                    if j == ls:
                        e(f"s_lshl_b32 s{S_T0}, s2, 13\ns_lshl_b32 s{S_T0+1}, s{S_A}, 11\ns_add_u32 s{S_T0}, s{S_T0}, s{S_T0+1}\ns_add_u32 s{S_T0}, s{S_T0}, {(l+1)*(2<<20)}")
                        e(f"s_add_u32 s{S_PB}, s6, s{S_T0}\ns_addc_u32 s{S_PB+1}, s7, 0")
                    for k in (range(max(k0,0), min(k0 + per, ntouch)) if j >= ls else []):
                        e(f"s_load_dword s{80 + k % (4 if p.tid else 16)}, s[{S_PB}:{S_PB+1}], {k * p.lspf}")
                nx = n + 1
                l2, j2 = divmod(nx, 16)
                if l2 == l and j2 <= (13 if prog else 15) and nx != 47 and not (l2 > 0 and 1 <= j2 <= p.apoll):
                    plan(nx)[0](); prepped.add(nx)
            issue(mid)
        if prog:
            e.vm_need([("x",16*l+15),("w",16*l+15)])
            e("s_barrier")
        if l < 2:
            n1 = 16*(l+1)
            if prog:
                prep_w(n1+2); e(f"s_mov_b32 s{S_SW2}, s{S_SW}"); prep_w(n1+3)
                e("s_barrier")
                issue_w(n1+2, S_SW2); issue_w(n1+3, S_SW)
            e.vm_need([("w",n1),("w",n1+1)])
            e("s_barrier")
            stamp(e,p,3+3*l,LSR)
            e(f"s_lshl_b32 s{S_RDY}, s{S_C}, 2\ns_lshl_b32 s{S_RDY}, 15, s{S_RDY}")
            e(f"s_add_u32 s{S_XBL}, s{S_XB1}, {WS_X2 if l == 1 else WS_X1}")
            ensure(n1+2, also=n1+3)
            dma_x(n1+2, True); stamp(e,p,4+3*l,LSR)
            if p.apoll: poll_async(l+1, ("ap", n1))
            dma_x(n1+3, True)
        else:
            e(f"s_cmp_eq_u32 s{S_C}, 0\ns_cbranch_scc0 L_nov\ns_cmp_eq_u32 s{S_A}, 0\ns_cbranch_scc0 L_nov")
            e(f"v_mov_b32 v{T+3}, s{S_TAG}\ns_lshl_b32 s{S_T0}, s{S_G}, 7\ns_add_u32 s{S_T0}, s{S_T0}, {WS_V}\nv_mov_b32 v{T+4}, s{S_T0}")
            e(f"buffer_store_dword v{T+3}, v{T+4}, s[{SRD_WS}:{SRD_WS+3}], 0 offen sc1")
            e.label("L_nov")
    if p.stamps:
        e("s_waitcnt vmcnt(0)")
        stamp(e,p,15,LSR)
        stamp_out(e,p,60)

def gen(p=None):
    p = p or P()
    CUR["order"] = p.order
    e = Em()
    hdr = f"""; DCN-v2 cross network, 3 layers fused in one launch.  Generated by my own generator script.
; @launch grid=(256,1,1) block=(512,1,1) lds={LDS_SIZE}
.amdgcn_target "amdgcn-amd-amdhsa--gfx950"
.text
.globl {KNAME}
.p2align 8
.type {KNAME},@function
{KNAME}:"""
    e(f"s_cmp_ge_u32 s2, 256\ns_cbranch_scc1 L_end")
    if p.stamps: e("s_memtime s[66:67]\ns_memrealtime s[68:69]\ns_waitcnt lgkmcnt(0)")
    if p.enc: e("s_memrealtime s[68:69]")
    e("s_load_dwordx4 s[4:7], s[0:1], 0")
    e("s_load_dwordx2 s[44:45], s[0:1], 16")
    e("s_load_dwordx2 s[42:43], s[0:1], 24")
    e("s_load_dwordx2 s[40:41], s[0:1], 40")
    e(f"v_lshrrev_b32 v1, 6, v0\ns_lshr_b32 s{S_C}, s2, 3\ns_and_b32 s{S_C}, s{S_C}, 7")
    e(f"s_lshr_b32 s{S_G}, s2, 6\ns_lshl_b32 s{S_G}, s{S_G}, 3\ns_and_b32 s{S_T0}, s2, 7\ns_add_u32 s{S_G}, s{S_G}, s{S_T0}")
    e(f"v_readfirstlane_b32 s{S_WAVE}, v1")
    e("s_nop 3")
    e(f"s_cmp_ge_u32 s{S_WAVE}, 4\ns_cbranch_scc1 L_loader")
    gen_compute(e, p)
    gen_loader(e, p)
    e.label("L_end")
    e("s_endpgm")
    tail = f""".section .rodata,"a"
.p2align 6
.amdhsa_kernel {KNAME}
  .amdhsa_next_free_vgpr 256
  .amdhsa_next_free_sgpr 102
  .amdhsa_accum_offset 256
  .amdhsa_group_segment_fixed_size 0
  .amdhsa_kernarg_size 48
  .amdhsa_user_sgpr_count 2
  .amdhsa_user_sgpr_kernarg_segment_ptr 1
  .amdhsa_system_sgpr_workgroup_id_x 1
.end_amdhsa_kernel
"""
    return hdr + "\n" + e.text() + "\n" + tail

if __name__ == "__main__":
    p = P()
    for a in sys.argv[1:]:
        k, v = a.split("=")
        setattr(p, k, eval(v))
    sys.stdout.write(gen(p))
```
